```python
import torch

def _softmax(x, axis=-1):
    return torch.softmax(x, dim=axis)
def _gelu(x):
    return torch.nn.functional.gelu(x, approximate="tanh")
def _silu(x):
    return torch.nn.functional.silu(x)
def _sigmoid(x):
    return torch.sigmoid(x)
def _layernorm(x, axis=-1, eps=1e-5):
    m = x.mean(dim=axis, keepdim=True)
    v = x.var(dim=axis, keepdim=True, unbiased=False)
    return (x - m) / torch.sqrt(v + eps)
def _scatter_add(tgt, idx, src, axis=0):
    return tgt.clone().index_add_(axis, idx, src)
def _segment_sum(src, seg, n):
    out = torch.zeros((n,) + src.shape[1:], dtype=src.dtype)
    return out.index_add_(0, seg, src)
def _pad(x, pw):
    flat = tuple(v for pair in reversed(pw) for v in pair)
    return torch.nn.functional.pad(x, flat)

kernel_name = 'sequential_preLN__mha_block_cached__mixer_token_mlp__decode'

def setup_inputs():

    _w = (lambda a: (lambda t: t.to(torch.bfloat16) if t.is_floating_point() else t)(torch.as_tensor(a)))
    def _A_setup():
        B, Sq, D = 2, 1, 640
        H, Sk, Dh = 32, 8192, 128
        return {
            "x": _w((lambda *s: torch.randn(*s, dtype=torch.bfloat16) * 0.05)(B, Sq, D)),
            "k_cache": _w((lambda *s: torch.randn(*s, dtype=torch.bfloat16) * 3.2)(B, H, Sk, Dh)),
            "v_cache": _w((lambda *s: torch.randn(*s, dtype=torch.bfloat16) * 0.8)(B, H, Sk, Dh)),
            "wq": _w((lambda *s: torch.randn(*s, dtype=torch.bfloat16) * 3.2)(D, H * Dh) * (D ** -0.5)),
            "wo": _w((lambda *s: torch.randn(*s, dtype=torch.bfloat16) * 0.8)(H * Dh, D) * ((H * Dh) ** -0.5)),
        }
    _A_in = _A_setup()

    def _B_setup():
        B, S, D, F = 2, 1, 640, 1728
        return {
            "x": _w((lambda *s: torch.randn(*s, dtype=torch.bfloat16) * 0.05)(B, S, D)),
            "w1": _w((lambda *s: torch.randn(*s, dtype=torch.bfloat16) * 1.6)(S, F) * (S ** -0.5)),
            "b1": _w((lambda *s: torch.randn(*s, dtype=torch.bfloat16) * 1.6)(F) * 0.02),
            "w2": _w((lambda *s: torch.randn(*s, dtype=torch.bfloat16) * 1.6)(F, S) * (F ** -0.5)),
            "b2": _w((lambda *s: torch.randn(*s, dtype=torch.bfloat16) * 0.8)(S) * 0.02),
        }
    _B_in = _B_setup()

    return {
        "A_x": _A_in["x"],
        "A_k_cache": _A_in["k_cache"],
        "A_v_cache": _A_in["v_cache"],
        "A_wq": _A_in["wq"],
        "A_wo": _A_in["wo"],
        "B_x": _B_in["x"],
        "B_w1": _B_in["w1"],
        "B_b1": _B_in["b1"],
        "B_w2": _B_in["w2"],
        "B_b2": _B_in["b2"],
    }

def reference(A_x, A_k_cache, A_v_cache, A_wq, A_wo, B_x, B_w1, B_b1, B_w2, B_b2):
    def _A_ref(x, k_cache, v_cache, wq, wo):
        B, Sq, D = x.shape
        H, Dh = 32, 128
        q = (lambda x, *d: x.permute(*d))((x @ wq).reshape(B, Sq, H, Dh), 0, 2, 1, 3)
        scores = torch.einsum("bhqd,bhkd->bhqk", q, k_cache) * (Dh ** -0.5)
        p = _softmax(scores, axis=-1)
        o = torch.einsum("bhqk,bhkd->bhqd", p, v_cache)
        return (lambda x, *d: x.permute(*d))(o, 0, 2, 1, 3).reshape(B, Sq, H * Dh) @ wo

    def _B_ref(x, w1, b1, w2, b2):
        B, S, D = x.shape
        h = _layernorm(x, axis=-1)
        u = torch.einsum("bsd,sf->bdf", h, w1) + b1
        u = _gelu(u)
        y = torch.einsum("bdf,fs->bds", u, w2) + b2
        return (lambda x, *d: x.permute(*d))(y, 0, 2, 1)

    x = A_x
    h = x + _A_ref(_layernorm(x, axis=-1), A_k_cache, A_v_cache, A_wq, A_wo)
    h2 = h + _B_ref(_layernorm(h, axis=-1), B_w1, B_b1, B_w2, B_b2)
    return h2
```

```python
import sys
NAME = "sequential_preLN__mha_block_cached__mixer_token_mlp__decode_kernel"

DEF = dict(
    D=32,
    PS=6,
    HFIRST=1,
    WQ_BURST=8,
    WQ_P=5,
    WO_P=2,
    WPOL="nt",
    KPOL="nt",
    R=8,
    STAMPS=0,
    DRY=0,
    SPIN=200000,
)

WS_STAT = 0
WS_HV = 0x4000
WS_PART = 0x20000
WS_SIZE = WS_PART + 256 * 2560
L_QP = 0
L_OP = 2048
L_GP = 4096
L_T1 = L_GP + 10240
L_HB = L_T1 + 2560
L_ST = L_HB + 1280
L_MP = L_ST + 64
L_SZ = L_MP + 256
L_SZ = (L_SZ + 255) // 256 * 256

LOG2E = 0x3FB8AA3B
SCALE = 0x3DB504F3
INV640 = 0x3ACCCCCD
EPS = 0x3727C5AC
DPPF = "row_mask:0xf bank_mask:0xf"


class G:
    def __init__(self, P):
        self.P = P
        self.o = []
        self.q = []
        self.nlab = 0

    def e(self, s):
        self.o.append(s)

    def vm(self, s, tag=None):
        self.o.append(s)
        self.q.append(tag)

    def wait_tag(self, tag):
        idx = [k for k, t in enumerate(self.q) if t == tag]
        if not idx:
            return False
        i = max(idx)
        n = len(self.q) - 1 - i
        assert n <= 63
        self.e(f"s_waitcnt vmcnt({n})")
        self.q = self.q[i + 1:]
        return True

    def wait_n(self, n):
        if len(self.q) > n:
            self.e(f"s_waitcnt vmcnt({n})")
            self.q = self.q[len(self.q) - n:] if n else []

    def lab(self, base):
        self.nlab += 1
        return f"L_{base}_{self.nlab}"

    def stamp(self, k):
        if self.P["STAMPS"]:
            self.e(f"s_memrealtime s[{64 + 2 * k}:{65 + 2 * k}]")

    def srd(self, d, blo, bhi, size):
        self.e(f"s_mov_b32 s{d}, s{blo}")
        self.e(f"s_mov_b32 s{d + 1}, s{bhi}")
        self.e(f"s_mov_b32 s{d + 2}, {size}")
        self.e(f"s_mov_b32 s{d + 3}, 0x20000")

    def wave_reduce(self, regs_ops):
        steps = ["quad_perm:[1,0,3,2] " + DPPF, "quad_perm:[2,3,0,1] " + DPPF,
                 "row_half_mirror " + DPPF, "row_mirror " + DPPF,
                 "row_bcast:15 row_mask:0xa bank_mask:0xf", "row_bcast:31 row_mask:0xc bank_mask:0xf"]
        n = len(regs_ops)
        self.e("s_nop 1")
        for st in steps:
            for (r, op) in regs_ops:
                self.e(f"{op}_dpp v{r}, v{r}, v{r} {st}")
            if n < 3:
                self.e(f"s_nop {2 - n}" if n < 3 and 2 - n >= 0 else "")
        self.e("s_nop 0")


S_WAVE = 3
S_RW = 4
S_H = 5
S_B = 6
S_SPLIT = 7
S_BLK = 8
S_OFF = 9
S_T0, S_T1, S_T2, S_T3 = 10, 11, 12, 13
S_DRY = 14
S_SPIN = 15
SRD_A = 44
SRD_B = 48
SRD_X = 52
SRD_WS = 56
SRD_C = 60
S_F = 96
S_M = 42
V_LANE = 1
V_OFFA = 2
V_OFFB = 3
V_MASK = 4
V_W1 = 8
V_B1 = 12
V_W2 = 16
V_A0 = 20
V_A1 = 24
V_T = 28
V_LDS = 64
V_XR = 66
V_QB = 68
V_SC = 84
V_ACC = 92
V_MX = 108
V_RING = 128
V_XC = 68
V_G = 72
V_W = 96


def ln_stats(g, vals, sC, vS1, vS2, vtmp, out_m, out_r):
    e = g.e
    for i, v in enumerate(vals):
        t = vtmp + (i & 3)
        if sC is not None:
            e(f"v_subrev_f32 v{t}, s{sC}, v{v}")
        else:
            t = v
        if i == 0:
            e(f"v_mov_b32 v{vS1}, v{t}")
            e(f"v_mul_f32 v{vS2}, v{t}, v{t}")
        else:
            e(f"v_add_f32 v{vS1}, v{vS1}, v{t}")
            e(f"v_fmac_f32 v{vS2}, v{t}, v{t}")
    g.wave_reduce([(vS1, "v_add_f32"), (vS2, "v_add_f32")])
    e(f"v_readlane_b32 s{S_T0}, v{vS1}, 63")
    e(f"v_readlane_b32 s{S_T1}, v{vS2}, 63")
    e(f"s_mov_b32 s{S_T2}, {INV640:#x}")
    e("s_nop 0")
    e(f"v_mov_b32 v{vS1}, s{S_T0}")
    e(f"v_mov_b32 v{vS2}, s{S_T1}")
    e(f"v_mul_f32 v{vS1}, s{S_T2}, v{vS1}")
    e(f"v_mul_f32 v{vS2}, s{S_T2}, v{vS2}")
    e(f"v_fma_f32 v{vS2}, -v{vS1}, v{vS1}, v{vS2}")
    if sC is not None:
        e(f"v_add_f32 v{vS1}, s{sC}, v{vS1}")
    e(f"v_max_f32 v{vS2}, 0, v{vS2}")
    e(f"v_cvt_pk_bf16_f32 v{out_m}, 0, v{vS1}")
    e(f"v_cvt_pk_bf16_f32 v{vS2}, 0, v{vS2}")
    e(f"v_add_f32 v{vS2}, {EPS:#x}, v{vS2}")
    e(f"v_cvt_pk_bf16_f32 v{vS2}, 0, v{vS2}")
    e(f"v_sqrt_f32 v{vS2}, v{vS2}")
    e("s_nop 0")
    e(f"v_cvt_pk_bf16_f32 v{vS2}, 0, v{vS2}")
    e(f"v_rcp_f32 v{out_r}, v{vS2}")
    e("s_nop 0")


def build_A(g, dst, src, c):
    for j in range(4):
        g.e(f"v_and_b32_dpp v{dst + j}, v{src}, v{V_MASK + j} row_newbcast:{c} {DPPF}")


def mlp_loads(g):
    e = g.e
    e(f"v_lshlrev_b32 v{V_T}, 1, v0")
    for k, (lo, base) in enumerate([(28, V_W1), (30, V_B1), (32, V_W2)]):
        g.srd(SRD_C, lo, lo + 1, 3456)
        for i in range(4):
            e(f"v_mov_b32 v{base + i}, 0")
        for i in range(4):
            g.vm(f"buffer_load_short_d16_hi v{base + i}, v{V_T}, s[{SRD_C}:{SRD_C + 3}], 0 offen offset:{i * 1024}", "mlp")


def barrier(g):
    if g.P["DRY"]:
        l = g.lab("nb")
        g.e(f"s_cmp_lg_u32 s{S_DRY}, 0")
        g.e(f"s_cbranch_scc1 {l}")
        g.e("s_barrier")
        g.e(f"{l}:")
    else:
        g.e("s_barrier")


def poll_loop(g, loads, words, sleep=0):
    e = g.e
    top = g.lab("poll")
    done = g.lab("pdone")
    e(f"s_mov_b32 s{S_SPIN}, {g.P['SPIN']}")
    e(f"{top}:")
    for l in loads:
        e(l)
    e("s_waitcnt vmcnt(0)")
    t = V_T + 30
    w = list(words)
    if len(w) == 1:
        e(f"v_cmp_eq_u32 vcc, -1, v{w[0]}")
    else:
        first = True
        while w:
            if first:
                if len(w) >= 3:
                    e(f"v_max3_u32 v{t}, v{w[0]}, v{w[1]}, v{w[2]}"); w = w[3:]
                else:
                    e(f"v_max_u32 v{t}, v{w[0]}, v{w[1]}"); w = w[2:]
                first = False
            elif len(w) >= 2:
                e(f"v_max3_u32 v{t}, v{t}, v{w[0]}, v{w[1]}"); w = w[2:]
            else:
                e(f"v_max_u32 v{t}, v{t}, v{w[0]}"); w = w[1:]
        e(f"v_cmp_eq_u32 vcc, -1, v{t}")
    e(f"s_sub_u32 s{S_SPIN}, s{S_SPIN}, 1")
    e(f"s_cbranch_scc1 {done}")
    e(f"s_cbranch_vccz {done}")
    if sleep:
        e(f"s_sleep {sleep}")
    e(f"s_branch {top}")
    e(f"{done}:")
    g.q = []


def gen(**kw):
    P = dict(DEF); P.update(kw)
    g = G(P); e = g.e
    D = P["D"]; R = P["R"]
    lds_total = L_SZ * (2 if P["DRY"] else 1)
    e(f"; @launch grid=(256,1,1) block=(512,1,1) lds={lds_total}")
    e('.amdgcn_target "amdgcn-amd-amdhsa--gfx950"')
    e(".text"); e(f".globl {NAME}"); e(".p2align 8"); e(f".type {NAME},@function"); e(f"{NAME}:")
    e("s_cmp_ge_u32 s2, 256")
    e("s_cbranch_scc1 L_end")
    g.stamp(0)
    e("s_load_dwordx16 s[16:31], s[0:1], 0")
    e("s_load_dwordx8 s[32:39], s[0:1], 64")
    e("s_load_dwordx2 s[40:41], s[0:1], 96")
    e(f"v_lshrrev_b32 v{V_T}, 6, v0")
    e(f"v_and_b32 v{V_LANE}, 63, v0")
    e(f"v_readfirstlane_b32 s{S_WAVE}, v{V_T}")
    e(f"s_and_b32 s{S_H}, s2, 31")
    e(f"s_lshr_b32 s{S_B}, s2, 7")
    e(f"s_bfe_u32 s{S_SPLIT}, s2, 0x20005")
    e(f"s_lshl_b32 s{S_BLK}, s{S_H}, 2")
    e(f"s_add_u32 s{S_BLK}, s{S_BLK}, s{S_SPLIT}")
    e(f"s_lshl_b32 s{S_T0}, s{S_B}, 7")
    e(f"s_add_u32 s{S_BLK}, s{S_BLK}, s{S_T0}")
    e(f"s_and_b32 s{S_RW}, s{S_WAVE}, 3")
    e(f"s_mov_b32 s{S_DRY}, 0")
    e(f"v_mov_b32 v{V_LDS}, 0")
    e(f"v_lshrrev_b32 v{V_T + 1}, 4, v{V_LANE}")
    e(f"v_and_b32 v{V_T + 2}, 15, v{V_LANE}")
    e(f"s_cmp_lt_u32 s{S_WAVE}, 4")
    e(f"s_cbranch_scc{1 if P['HFIRST'] else 0} L_helper")

    e(f"v_bfe_u32 v{V_T + 3}, v{V_LANE}, 2, 2")
    e(f"v_and_b32 v{V_T + 4}, 3, v{V_LANE}")
    e(f"s_lshl_b32 s{S_T0}, s{S_RW}, 10")
    e(f"v_lshlrev_b32 v{V_OFFA}, 8, v{V_T + 3}")
    e(f"v_lshl_add_u32 v{V_OFFA}, v{V_T + 1}, 6, v{V_OFFA}")
    e(f"v_lshl_add_u32 v{V_OFFA}, v{V_T + 4}, 4, v{V_OFFA}")
    e(f"v_add_u32 v{V_OFFA}, s{S_T0}, v{V_OFFA}")
    e(f"v_lshl_add_u32 v{V_OFFB}, v{V_LANE}, 4, s{S_T0}")
    e(f"s_lshl_b32 s{S_T1}, s{S_BLK}, 19")
    e(f"s_mov_b32 s{S_OFF}, 0")
    e("s_waitcnt lgkmcnt(0)")
    e(f"s_add_u32 s{SRD_A}, s18, s{S_T1}"); e(f"s_addc_u32 s{SRD_A + 1}, s19, 0")
    e(f"s_mov_b32 s{SRD_A + 2}, 0x80000"); e(f"s_mov_b32 s{SRD_A + 3}, 0x20000")
    e(f"s_add_u32 s{SRD_B}, s20, s{S_T1}"); e(f"s_addc_u32 s{SRD_B + 1}, s21, 0")
    e(f"s_mov_b32 s{SRD_B + 2}, 0x80000"); e(f"s_mov_b32 s{SRD_B + 3}, 0x20000")
    NL = 128

    def issue(i):
        r = V_RING + (i % D) * 4
        g.wait_n(P["PS"] - 1)
        if i == NL:
            e(f"s_mov_b32 s{S_OFF}, 0")
        srd, off = (SRD_A, V_OFFA) if i < NL else (SRD_B, V_OFFB)
        g.vm(f"buffer_load_dwordx4 v[{r}:{r + 3}], v{off}, s[{srd}:{srd + 3}], s{S_OFF} offen {P['KPOL']}", ("kv", i))
        e(f"s_addk_i32 s{S_OFF}, 0x1000")

    for i in range(D):
        issue(i)
    g.stamp(8)
    def common_setup():
        e("s_load_dword s26, s[34:35], 0")
        g.srd(SRD_WS, 40, 41, WS_SIZE)
        g.srd(SRD_X, 16, 17, 2560)
        e(f"v_and_b32 v{V_T + 5}, 1, v{V_LANE}")
        e(f"v_mov_b32 v{V_T + 6}, 0xffff")
        e(f"v_cmp_eq_u32 vcc, 1, v{V_T + 5}")
        e(f"v_mov_b32 v{V_T + 7}, 0xffff0000")
        e(f"v_bfe_u32 v{V_T + 8}, v{V_LANE}, 1, 3")
        e(f"v_cndmask_b32 v{V_T + 6}, v{V_T + 6}, v{V_T + 7}, vcc")
        for j in range(4):
            e(f"v_cmp_eq_u32 vcc, {j}, v{V_T + 8}")
            e("s_nop 1")
            e(f"v_cndmask_b32 v{V_MASK + j}, 0, v{V_T + 6}, vcc")
    common_setup()
    mlp_loads(g)
    e(f"s_lshl_b32 s{S_T0}, s2, 4")
    e(f"v_and_b32 v{V_T + 5}, 1, v{V_LANE}")
    e(f"v_lshl_add_u32 v{V_T + 5}, v{V_T + 5}, 3, s{S_T0}")
    g.vm(f"buffer_load_dwordx2 v[{V_XR}:{V_XR + 1}], v{V_T + 5}, s[{SRD_X}:{SRD_X + 3}], 0 offen", "xr")
    e(f"s_mov_b32 s96, 0x22222222"); e(f"s_mov_b32 s97, 0x22222222")
    e(f"s_mov_b32 s98, 0x44444444"); e(f"s_mov_b32 s99, 0x44444444")
    e(f"s_mov_b32 s100, 0x88888888"); e(f"s_mov_b32 s101, 0x88888888")
    e(f"v_lshlrev_b32 v{V_T + 5}, 7, v{V_T + 1}")
    e(f"v_lshl_add_u32 v{V_T + 5}, v{V_T + 4}, 5, v{V_T + 5}")
    e("s_barrier")
    g.stamp(9)
    q0 = V_T + 4
    e(f"v_mov_b32 v{V_MX}, v{V_T + 5}")
    for w in range(4):
        e(f"ds_read_b128 v[{q0 + 8 * w}:{q0 + 8 * w + 3}], v{V_MX} offset:{L_QP + w * 512}")
        e(f"ds_read_b128 v[{q0 + 8 * w + 4}:{q0 + 8 * w + 7}], v{V_MX} offset:{L_QP + w * 512 + 16}")
    e("s_waitcnt lgkmcnt(0)")
    for i in range(8):
        e(f"v_add_f32 v{q0 + i}, v{q0 + i}, v{q0 + 8 + i}")
        e(f"v_add_f32 v{q0 + 16 + i}, v{q0 + 16 + i}, v{q0 + 24 + i}")
    for i in range(8):
        e(f"v_add_f32 v{q0 + i}, v{q0 + i}, v{q0 + 16 + i}")
    for j in range(4):
        e(f"v_cvt_pk_bf16_f32 v{q0 + 8 + j}, v{q0 + 2 * j}, v{q0 + 2 * j + 1}")
    for J in range(4):
        e(f"v_cmp_eq_u32 vcc, {J}, v{V_T + 3}")
        e("s_nop 1")
        for j in range(4):
            e(f"v_cndmask_b32 v{V_QB + 4 * J + j}, 0, v{q0 + 8 + j}, vcc")
    e(f"s_mov_b32 s{S_M}, {SCALE:#x}")
    e("s_nop 0")
    for gi in range(8):
        for L in range(16):
            i = gi * 16 + L
            a, J = L >> 2, L & 3
            r = V_RING + (i % D) * 4
            acc = V_ACC + 4 * a
            g.wait_tag(("kv", i))
            c = "0" if J == 0 else f"v[{acc}:{acc + 3}]"
            e(f"v_mfma_f32_16x16x32_bf16 v[{acc}:{acc + 3}], v[{r}:{r + 3}], v[{V_QB + 4 * J}:{V_QB + 4 * J + 3}], {c}")
            if i + D < 2 * NL:
                issue(i + D)
        e("s_nop 3")
        for a in range(4):
            acc = V_ACC + 4 * a
            t = V_T + a
            e(f"v_mov_b32_dpp v{t}, v{acc} quad_perm:[0,0,0,0] {DPPF}")
            for k in range(1, 4):
                e(f"v_add_f32_dpp v{t}, v{acc + k}, v{t} quad_perm:[{k},{k},{k},{k}] {DPPF}")
        e(f"v_cndmask_b32 v{V_T}, v{V_T}, v{V_T + 1}, s[96:97]")
        e(f"v_cndmask_b32 v{V_T}, v{V_T}, v{V_T + 2}, s[98:99]")
        e(f"v_cndmask_b32 v{V_T}, v{V_T}, v{V_T + 3}, s[100:101]")
        e(f"v_cvt_pk_bf16_f32 v{V_T}, 0, v{V_T}")
        e(f"v_mul_f32 v{V_T}, s{S_M}, v{V_T}")
        e(f"v_cvt_pk_bf16_f32 v{V_SC + gi}, 0, v{V_T}")
        if gi == 0:
            e(f"v_mov_b32 v{V_MX}, v{V_SC}")
        else:
            e(f"v_max_f32 v{V_MX}, v{V_MX}, v{V_SC + gi}")
    g.stamp(10)
    g.wave_reduce([(V_MX, "v_max_f32")])
    e(f"v_readlane_b32 s{S_M}, v{V_MX}, 63")
    e(f"s_mov_b32 s{S_M + 1}, {LOG2E:#x}")
    e("s_nop 0")
    for gi in range(8):
        e(f"v_subrev_f32 v{V_T + gi}, s{S_M}, v{V_SC + gi}")
    for gi in range(8):
        e(f"v_mul_f32 v{V_T + gi}, s{S_M + 1}, v{V_T + gi}")
    for gi in range(8):
        e(f"v_exp_f32 v{V_T + gi}, v{V_T + gi}")
    e("s_nop 0")
    for gi in range(8):
        e(f"v_cvt_pk_bf16_f32 v{V_SC + gi}, v{V_T + gi}, v{V_T + gi}")
    for gi in range(4):
        e(f"v_add_f32 v{V_T + gi}, v{V_T + gi}, v{V_T + 4 + gi}")
    e(f"v_add_f32 v{V_T}, v{V_T}, v{V_T + 1}")
    e(f"v_add_f32 v{V_T + 2}, v{V_T + 2}, v{V_T + 3}")
    e(f"v_add_f32 v{V_T + 9}, v{V_T}, v{V_T + 2}")
    build_A(g, V_A0, V_SC, 0)
    g.wave_reduce([(V_T + 9, "v_add_f32")])
    e(f"v_mov_b32 v{V_T + 8}, s{S_M}")
    e(f"v_min_u32 v{V_T + 9}, -2, v{V_T + 9}")
    e(f"s_lshl_b32 s{S_T0}, s{S_BLK}, 5")
    e(f"s_lshl_b32 s{S_T1}, s{S_RW}, 3")
    e(f"s_add_u32 s{S_T0}, s{S_T0}, s{S_T1}")
    e("s_lshl_b64 exec, 1, 63")
    g.vm(f"buffer_store_dwordx2 v[{V_T + 8}:{V_T + 9}], off, s[{SRD_WS}:{SRD_WS + 3}], s{S_T0} offset:{WS_STAT} sc1", "stat")
    e("s_mov_b64 exec, -1")
    for L in range(NL):
        i = NL + L
        r = V_RING + (i % D) * 4
        A = V_A0 if (L & 1) == 0 else V_A1
        An = V_A1 if (L & 1) == 0 else V_A0
        if not g.wait_tag(("kv", i)) and i + D - 1 >= 2 * NL:
            e("s_nop 0")
        c = "0" if L == 0 else f"v[{V_ACC}:{V_ACC + 3}]"
        e(f"v_mfma_f32_16x16x32_bf16 v[{V_ACC}:{V_ACC + 3}], v[{A}:{A + 3}], v[{r}:{r + 3}], {c}")
        if L + 1 < NL:
            n = (L + 1) & 15
            build_A(g, An, V_SC + ((L + 1) >> 4), 4 * (n & 3) + (n >> 2))
        if i + D < 2 * NL:
            issue(i + D)
        else:
            e("s_nop 0")
    g.stamp(11)
    g.q = []
    e("L_tail_S:")
    e(f"v_and_b32 v{V_T}, 15, v{V_LANE}")
    e(f"v_lshrrev_b32 v{V_T + 1}, 4, v{V_LANE}")
    e(f"s_lshl_b32 s{S_T0}, s{S_RW}, 9")
    e(f"v_lshl_add_u32 v{V_T}, v{V_T}, 5, v{V_LDS}")
    e(f"v_lshl_add_u32 v{V_T}, v{V_T + 1}, 4, v{V_T}")
    e(f"v_add_u32 v{V_T}, s{S_T0}, v{V_T}")
    e("s_mov_b32 exec_hi, 0")
    e("s_nop 1")
    e(f"ds_write_b128 v{V_T}, v[{V_ACC}:{V_ACC + 3}] offset:{L_OP}")
    e("s_mov_b32 exec_hi, -1")
    e("s_waitcnt lgkmcnt(0)")
    barrier(g)
    barrier(g)
    e(f"s_cmp_eq_u32 s{S_RW}, 0")
    e("s_cbranch_scc1 L_reducer")
    e(f"s_cmp_eq_u32 s{S_RW}, 1")
    e("s_cbranch_scc1 L_hop2")
    e("s_branch L_mlp")

    e("L_reducer:")
    e("s_cmp_ge_u32 s2, 160")
    e("s_cbranch_scc1 L_red_done")
    e("s_cmp_ge_u32 s2, 80")
    e(f"s_cselect_b32 s{S_T0}, {128 * 2560 - 80 * 32}, 0")
    e(f"s_lshl_b32 s{S_T1}, s2, 5")
    e(f"s_add_u32 s{S_T0}, s{S_T0}, s{S_T1}")
    e(f"s_add_u32 s{S_T0}, s{S_T0}, {WS_PART}")
    e(f"v_lshrrev_b32 v{V_T}, 1, v{V_LANE}")
    e(f"v_mul_u32_u24 v{V_T}, 2560, v{V_T}")
    e(f"v_and_b32 v{V_T + 1}, 1, v{V_LANE}")
    e(f"v_lshl_add_u32 v{V_T}, v{V_T + 1}, 4, v{V_T}")
    e(f"s_add_u32 s{S_T1}, s{S_T0}, {32 * 2560}")
    e(f"s_add_u32 s{S_T2}, s{S_T0}, {64 * 2560}")
    e(f"s_add_u32 s{S_T3}, s{S_T0}, {96 * 2560}")
    d0 = V_T + 4
    loads = [f"buffer_load_dwordx4 v[{d0 + 4 * k}:{d0 + 4 * k + 3}], v{V_T}, s[{SRD_WS}:{SRD_WS + 3}], s{S_T0 + k} offen sc1" for k in range(4)]
    poll_loop(g, loads, [d0 + k for k in range(16)])
    g.stamp(12)
    for k in range(4):
        e(f"v_add_f32 v{d0 + k}, v{d0 + k}, v{d0 + 4 + k}")
        e(f"v_add_f32 v{d0 + 8 + k}, v{d0 + 8 + k}, v{d0 + 12 + k}")
    for k in range(4):
        e(f"v_add_f32 v{d0 + k}, v{d0 + k}, v{d0 + 8 + k}")
    for st in ["quad_perm:[2,3,0,1]", "row_ror:4", "row_ror:8"]:
        for k in range(4):
            e(f"v_add_f32_dpp v{d0 + k}, v{d0 + k}, v{d0 + k} {st} {DPPF}")
    for sw in ["v_permlane16_swap_b32", "v_permlane32_swap_b32"]:
        for k in range(4):
            e(f"v_mov_b32 v{d0 + 4 + k}, v{d0 + k}")
        for k in range(4):
            e(f"{sw} v{d0 + k}, v{d0 + 4 + k}")
        e("s_nop 0")
        for k in range(4):
            e(f"v_add_f32 v{d0 + k}, v{d0 + k}, v{d0 + 4 + k}")
    e(f"v_lshlrev_b32 v{d0 + 4}, 16, v{V_XR}")
    e(f"v_and_b32 v{d0 + 5}, 0xffff0000, v{V_XR}")
    e(f"v_lshlrev_b32 v{d0 + 6}, 16, v{V_XR + 1}")
    e(f"v_and_b32 v{d0 + 7}, 0xffff0000, v{V_XR + 1}")
    for k in range(4):
        e(f"v_cvt_pk_bf16_f32 v{d0 + k}, 0, v{d0 + k}")
    for k in range(4):
        e(f"v_add_f32 v{d0 + k}, v{d0 + k}, v{d0 + 4 + k}")
    e(f"v_cvt_pk_bf16_f32 v{d0 + 8}, v{d0}, v{d0 + 1}")
    e(f"v_cvt_pk_bf16_f32 v{d0 + 9}, v{d0 + 2}, v{d0 + 3}")
    e(f"v_lshlrev_b32 v{V_T + 1}, 3, v{V_T + 1}")
    e(f"v_sub_u32 v{V_T}, v{V_T}, v{V_T + 1}")
    e(f"v_min_u32 v{d0 + 8}, -2, v{d0 + 8}")
    e(f"v_min_u32 v{d0 + 9}, -2, v{d0 + 9}")
    e(f"s_lshl_b32 s{S_T0}, s2, 4")
    e(f"s_add_u32 s{S_T0}, s{S_T0}, {WS_HV}")
    if 2 * R < 64:
        e(f"s_bfm_b64 exec, {2 * R}, 0")
    e(f"buffer_store_dwordx2 v[{d0 + 8}:{d0 + 9}], v{V_T}, s[{SRD_WS}:{SRD_WS + 3}], s{S_T0} offen sc1")
    e("s_mov_b64 exec, -1")
    e("L_red_done:")
    if P["DRY"]:
        e(f"s_cmp_lg_u32 s{S_DRY}, 0")
        e("s_cbranch_scc1 L_hop2")
    e("s_branch L_mlp")

    e("L_hop2:")
    e(f"s_and_b32 s{S_T0}, s2, {R - 1}")
    e(f"s_mul_i32 s{S_T0}, s{S_T0}, 2560")
    e(f"s_mul_i32 s{S_T1}, s{S_B}, 1280")
    e(f"s_add_u32 s{S_T0}, s{S_T0}, s{S_T1}")
    e(f"s_add_u32 s{S_T0}, s{S_T0}, {WS_HV}")
    e(f"v_lshlrev_b32 v{V_T}, 4, v{V_LANE}")
    e(f"v_lshlrev_b32 v{V_T + 1}, 2, v{V_LANE}")
    h0 = V_T + 4
    loads = [f"buffer_load_dwordx4 v[{h0}:{h0 + 3}], v{V_T}, s[{SRD_WS}:{SRD_WS + 3}], s{S_T0} offen sc1",
             f"buffer_load_dword v{h0 + 4}, v{V_T + 1}, s[{SRD_WS}:{SRD_WS + 3}], s{S_T0} offen offset:1024 sc1"]
    poll_loop(g, loads, [h0 + k for k in range(5)])
    g.stamp(13)
    f0 = V_T + 12
    for k in range(5):
        e(f"v_lshlrev_b32 v{f0 + 2 * k}, 16, v{h0 + k}")
        e(f"v_and_b32 v{f0 + 2 * k + 1}, 0xffff0000, v{h0 + k}")
    e(f"v_add_u32 v{V_T}, v{V_T}, v{V_LDS}")
    e(f"v_add_u32 v{V_T + 1}, v{V_T + 1}, v{V_LDS}")
    e(f"v_readfirstlane_b32 s{S_M}, v{f0}")
    e(f"ds_write_b128 v{V_T}, v[{h0}:{h0 + 3}] offset:{L_HB}")
    e(f"ds_write_b32 v{V_T + 1}, v{h0 + 4} offset:{L_HB + 1024}")
    vS1, vS2, vtm, vm_, vr_ = V_T + 22, V_T + 23, V_T + 24, V_T + 28, V_T + 29
    ln_stats(g, [f0 + k for k in range(10)], S_M, vS1, vS2, vtm, vm_, vr_)
    for k in range(10):
        e(f"v_sub_f32 v{f0 + k}, v{f0 + k}, v{vm_}")
    for k in range(10):
        e(f"v_cvt_pk_bf16_f32 v{f0 + k}, 0, v{f0 + k}")
    for k in range(10):
        e(f"v_mul_f32 v{f0 + k}, v{f0 + k}, v{vr_}")
    for k in range(10):
        e(f"v_cvt_pk_bf16_f32 v{f0 + k}, 0, v{f0 + k}")
    e(f"v_lshl_add_u32 v{V_T}, v{V_LANE}, 5, v{V_LDS}")
    e(f"v_lshl_add_u32 v{V_T + 1}, v{V_LANE}, 3, v{V_LDS}")
    e(f"ds_write_b128 v{V_T}, v[{f0}:{f0 + 3}] offset:{L_T1}")
    e(f"ds_write_b128 v{V_T}, v[{f0 + 4}:{f0 + 7}] offset:{L_T1 + 16}")
    e(f"ds_write_b64 v{V_T + 1}, v[{f0 + 8}:{f0 + 9}] offset:{L_T1 + 2048}")
    ln_stats(g, [f0 + k for k in range(10)], None, vS1, vS2, vtm, vm_, vr_)
    e(f"ds_write_b64 v{V_LDS}, v[{vm_}:{vr_}] offset:{L_ST}")
    e("s_waitcnt lgkmcnt(0)")
    e("s_branch L_mlp")

    e("L_helper:")
    g.q = []
    e(f"s_mul_i32 s{S_T0}, s{S_B}, 1280")
    e(f"v_lshl_add_u32 v{V_T + 3}, v{V_LANE}, 2, s{S_T0}")
    e(f"s_mul_i32 s{S_T1}, s{S_RW}, 320")
    e(f"s_add_u32 s{S_T1}, s{S_T1}, s{S_T0}")
    e(f"v_lshlrev_b32 v{V_T + 4}, 3, v{V_T + 2}")
    e(f"v_lshl_add_u32 v{V_T + 4}, v{V_T + 1}, 1, v{V_T + 4}")
    e(f"v_add_u32 v{V_T + 4}, s{S_T1}, v{V_T + 4}")
    e(f"s_mul_i32 s{S_T2}, s{S_RW}, {160 * 8192}")
    e(f"v_lshlrev_b32 v{V_OFFA}, 13, v{V_T + 1}")
    e(f"v_lshl_add_u32 v{V_OFFA}, v{V_T + 2}, 4, v{V_OFFA}")
    e(f"v_add_u32 v{V_OFFA}, s{S_T2}, v{V_OFFA}")
    e(f"s_mul_i32 s{S_T2}, s{S_RW}, {32 * 1280}")
    e(f"v_mul_u32_u24 v{V_OFFB}, 1280, v{V_T + 1}")
    e(f"v_lshl_add_u32 v{V_OFFB}, v{V_T + 2}, 4, v{V_OFFB}")
    e(f"v_add_u32 v{V_OFFB}, s{S_T2}, v{V_OFFB}")
    for r in range(3):
        e(f"v_mov_b32 v{V_XC + r}, 0")
    e(f"s_lshl_b32 s{S_T2}, s{S_H}, 8")
    e(f"s_mul_i32 s{S_T3}, s{S_H}, {128 * 1280}")
    e(f"s_mov_b32 s{S_OFF}, 0")
    e("s_waitcnt lgkmcnt(0)")
    g.srd(SRD_X, 16, 17, 2560)
    x0 = V_T + 12
    for k in range(5):
        g.vm(f"buffer_load_dword v{x0 + k}, v{V_T + 3}, s[{SRD_X}:{SRD_X + 3}], 0 offen offset:{k * 256}", "x")
    for r in range(3):
        g.vm(f"buffer_load_short_d16_hi v{V_XC + r}, v{V_T + 4}, s[{SRD_X}:{SRD_X + 3}], 0 offen offset:{r * 128}", "x")
    e(f"s_add_u32 s{SRD_A}, s22, s{S_T2}"); e(f"s_addc_u32 s{SRD_A + 1}, s23, 0")
    e(f"s_sub_u32 s{SRD_A + 2}, {640 * 8192}, s{S_T2}"); e(f"s_mov_b32 s{SRD_A + 3}, 0x20000")
    e(f"s_add_u32 s{SRD_B}, s24, s{S_T3}"); e(f"s_addc_u32 s{SRD_B + 1}, s25, 0")
    e(f"s_mov_b32 s{SRD_B + 2}, {128 * 1280}"); e(f"s_mov_b32 s{SRD_B + 3}, 0x20000")

    def wq_issue(j):
        r = V_W + 4 * j
        g.vm(f"buffer_load_dwordx4 v[{r}:{r + 3}], v{V_OFFA}, s[{SRD_A}:{SRD_A + 3}], s{S_OFF} offen {P['WPOL']}", ("wq", j))
        e(f"s_add_u32 s{S_OFF}, s{S_OFF}, 0x8000")

    nb = P["WQ_BURST"]
    for j in range(nb):
        wq_issue(j)
    g.stamp(1)
    common_setup()
    e(f"v_mov_b32 v{V_A0}, -1"); e(f"v_mov_b32 v{V_A0 + 1}, -1"); e(f"v_mov_b32 v{V_A0 + 2}, -1"); e(f"v_mov_b32 v{V_A0 + 3}, -1")
    e(f"s_lshl_b32 s{S_T0}, s{S_RW}, 6")
    e(f"v_add_u32 v{V_T + 5}, s{S_T0}, v{V_LANE}")
    e(f"v_lshlrev_b32 v{V_T + 6}, 4, v{V_T + 5}")
    e(f"s_mul_i32 s{S_T1}, s{S_BLK}, 2560")
    e(f"s_add_u32 s{S_T1}, s{S_T1}, {WS_PART}")
    e(f"v_cmp_gt_u32 vcc, 160, v{V_T + 5}")
    l_s = g.lab("ini")
    e("s_and_saveexec_b64 s[42:43], vcc")
    e(f"s_cbranch_execz {l_s}")
    e(f"buffer_store_dwordx4 v[{V_A0}:{V_A0 + 3}], v{V_T + 6}, s[{SRD_WS}:{SRD_WS + 3}], s{S_T1} offen sc1")
    e(f"{l_s}:")
    e("s_mov_b64 exec, -1")
    l_s = g.lab("ini")
    e(f"s_cmp_lg_u32 s{S_RW}, 3")
    e(f"s_cbranch_scc1 {l_s}")
    e(f"s_lshl_b32 s{S_T1}, s{S_BLK}, 5")
    e(f"v_lshlrev_b32 v{V_T + 6}, 4, v{V_LANE}")
    e("s_mov_b64 exec, 3")
    e(f"buffer_store_dwordx4 v[{V_A0}:{V_A0 + 3}], v{V_T + 6}, s[{SRD_WS}:{SRD_WS + 3}], s{S_T1} offen offset:{WS_STAT} sc1")
    e("s_mov_b64 exec, -1")
    e("s_cmp_ge_u32 s2, 160")
    e(f"s_cbranch_scc1 {l_s}")
    e(f"v_mul_u32_u24 v{V_T + 6}, 2560, v{V_LANE}")
    e(f"s_lshl_b32 s{S_T1}, s2, 4")
    e(f"s_add_u32 s{S_T1}, s{S_T1}, {WS_HV}")
    e(f"s_bfm_b64 exec, {R}, 0")
    e(f"buffer_store_dwordx4 v[{V_A0}:{V_A0 + 3}], v{V_T + 6}, s[{SRD_WS}:{SRD_WS + 3}], s{S_T1} offen sc1")
    e(f"{l_s}:")
    e("s_mov_b64 exec, -1")
    g.wait_tag("x")
    xf = V_T + 18
    for k in range(5):
        e(f"v_lshlrev_b32 v{xf + 2 * k}, 16, v{x0 + k}")
        e(f"v_and_b32 v{xf + 2 * k + 1}, 0xffff0000, v{x0 + k}")
    e(f"v_readfirstlane_b32 s{S_M}, v{xf}")
    e("s_nop 1")
    ln_stats(g, [xf + k for k in range(10)], S_M, V_T + 28, V_T + 29, V_T + 8, V_T + 30, V_T + 31)
    for r in range(3):
        e(f"v_sub_f32 v{V_XC + r}, v{V_XC + r}, v{V_T + 30}")
    for r in range(3):
        e(f"v_cvt_pk_bf16_f32 v{V_XC + r}, 0, v{V_XC + r}")
    for r in range(3):
        e(f"v_mul_f32 v{V_XC + r}, v{V_XC + r}, v{V_T + 31}")
    for r in range(3):
        e(f"v_cvt_pk_bf16_f32 v{V_XC + r}, v{V_XC + r}, v{V_XC + r}")
    g.stamp(2)
    e("s_nop 0")
    build_A(g, V_A0, V_XC, 0)
    nxt = nb
    pq = P["WQ_P"]
    for j in range(40):
        A = V_A0 if (j & 1) == 0 else V_A1
        An = V_A1 if (j & 1) == 0 else V_A0
        while nxt < 40 and nxt < j + pq:
            wq_issue(nxt); nxt += 1
        g.wait_tag(("wq", j))
        e("s_nop 0")
        r = V_W + 4 * j
        c = "0" if j == 0 else f"v[{V_G}:{V_G + 3}]"
        e(f"v_mfma_f32_16x16x32_bf16 v[{V_G}:{V_G + 3}], v[{A}:{A + 3}], v[{r}:{r + 3}], {c}")
        if j + 1 < 40:
            build_A(g, An, V_XC + ((j + 1) >> 4), (j + 1) & 15)
    e(f"v_and_b32 v{V_T}, 15, v{V_LANE}")
    e(f"v_lshrrev_b32 v{V_T + 1}, 4, v{V_LANE}")
    e(f"s_lshl_b32 s{S_T0}, s{S_RW}, 9")
    e(f"v_lshlrev_b32 v{V_T}, 5, v{V_T}")
    e(f"v_lshl_add_u32 v{V_T}, v{V_T + 1}, 4, v{V_T}")
    e(f"v_add_u32 v{V_T}, s{S_T0}, v{V_T}")
    e("s_mov_b32 exec_hi, 0")
    e("s_nop 1")
    e(f"ds_write_b128 v{V_T}, v[{V_G}:{V_G + 3}] offset:{L_QP}")
    e("s_mov_b32 exec_hi, -1")
    e("s_waitcnt vmcnt(0) lgkmcnt(0)")
    g.q = []
    e("s_barrier")
    g.stamp(3)
    g.srd(SRD_C, 38, 39, 256)
    l_s = g.lab("sig")
    e(f"s_cmp_lg_u32 s{S_RW}, 0")
    e(f"s_cbranch_scc1 {l_s}")
    e(f"v_mov_b32 v{V_T}, 1")
    e("s_mov_b64 exec, 1")
    e(f"buffer_atomic_add v{V_T}, off, s[{SRD_C}:{SRD_C + 3}], 0")
    e("s_mov_b64 exec, -1")
    e(f"{l_s}:")
    e(f"s_mov_b32 s{S_OFF}, 0")
    po = P["WO_P"]
    for rg in range(8):
        for cg in range(5):
            j = rg * 5 + cg
            r = V_W + 4 * j
            g.wait_n(po - 1)
            g.vm(f"buffer_load_dwordx4 v[{r}:{r + 3}], v{V_OFFB}, s[{SRD_B}:{SRD_B + 3}], s{S_OFF} offen offset:{cg * 256} {P['WPOL']}", ("wo", j))
        e(f"s_addk_i32 s{S_OFF}, 5120")
    g.stamp(4)
    top = g.lab("iw"); done = g.lab("iwd")
    e(f"s_mov_b32 s{S_SPIN}, {P['SPIN']}")
    e(f"{top}:")
    e(f"buffer_load_dword v{V_T}, off, s[{SRD_C}:{SRD_C + 3}], 0 sc1")
    e("s_waitcnt vmcnt(0)")
    e(f"v_cmp_gt_u32 vcc, 256, v{V_T}")
    e(f"s_sub_u32 s{S_SPIN}, s{S_SPIN}, 1")
    e(f"s_cbranch_scc1 {done}")
    e(f"s_cbranch_vccz {done}")
    e("s_sleep 16")
    e(f"s_branch {top}")
    e(f"{done}:")
    g.q = []
    mlp_loads(g)
    e(f"s_lshr_b32 s{S_T0}, s{S_BLK}, 2")
    e(f"s_lshl_b32 s{S_T0}, s{S_T0}, 7")
    e(f"v_and_b32 v{V_T}, 15, v{V_LANE}")
    e(f"v_lshlrev_b32 v{V_T}, 3, v{V_T}")
    poll_loop(g, [f"buffer_load_dwordx2 v[{V_T + 2}:{V_T + 3}], v{V_T}, s[{SRD_WS}:{SRD_WS + 3}], s{S_T0} offen offset:{WS_STAT} sc1"],
              [V_T + 3], sleep=32)
    g.stamp(5)
    e(f"v_mov_b32 v{V_T + 4}, v{V_T + 2}")
    for st in ["quad_perm:[1,0,3,2]", "quad_perm:[2,3,0,1]", "row_half_mirror", "row_mirror"]:
        e("s_nop 1")
        e(f"v_max_f32_dpp v{V_T + 4}, v{V_T + 4}, v{V_T + 4} {st} {DPPF}")
    e(f"v_sub_f32 v{V_T + 2}, v{V_T + 2}, v{V_T + 4}")
    e(f"v_mul_f32 v{V_T + 2}, {LOG2E:#x}, v{V_T + 2}")
    e(f"v_exp_f32 v{V_T + 2}, v{V_T + 2}")
    e("s_nop 0")
    e(f"v_mul_f32 v{V_T + 3}, v{V_T + 2}, v{V_T + 3}")
    for st in ["quad_perm:[1,0,3,2]", "quad_perm:[2,3,0,1]", "row_half_mirror", "row_mirror"]:
        e("s_nop 1")
        e(f"v_add_f32_dpp v{V_T + 3}, v{V_T + 3}, v{V_T + 3} {st} {DPPF}")
    e(f"v_rcp_f32 v{V_T + 3}, v{V_T + 3}")
    e("s_nop 0")
    e(f"v_mul_f32 v{V_T + 2}, v{V_T + 2}, v{V_T + 3}")
    e(f"s_lshl_b32 s{S_T0}, s{S_SPLIT}, 2")
    for w in range(4):
        e(f"v_readlane_b32 s{S_F + w}, v{V_T + 2}, s{S_T0}")
        e(f"s_add_u32 s{S_T0}, s{S_T0}, 1")
    if P["DRY"]:
        pass
    e("L_tail_H:")
    barrier(g)
    g.stamp(6)
    e(f"v_and_b32 v{V_T}, 15, v{V_LANE}")
    e(f"v_lshrrev_b32 v{V_T + 1}, 4, v{V_LANE}")
    e(f"s_lshl_b32 s{S_T0}, s{S_RW}, 7")
    e(f"v_lshl_add_u32 v{V_T + 2}, v{V_T}, 4, v{V_LDS}")
    e(f"v_lshl_add_u32 v{V_T + 2}, v{V_T + 1}, 2, v{V_T + 2}")
    e(f"v_add_u32 v{V_T + 2}, s{S_T0}, v{V_T + 2}")
    for w in range(4):
        e(f"ds_read_b32 v{V_T + 4 + w}, v{V_T + 2} offset:{L_OP + w * 512}")
    e(f"s_mul_i32 s{S_T0}, s{S_RW}, 2560")
    e(f"v_lshl_add_u32 v{V_T}, v{V_T}, 5, v{V_LDS}")
    e(f"v_lshl_add_u32 v{V_T}, v{V_T + 1}, 4, v{V_T}")
    e(f"v_add_u32 v{V_T}, s{S_T0}, v{V_T}")
    e("s_waitcnt lgkmcnt(0)")
    e(f"v_mul_f32 v{V_T + 4}, s{S_F}, v{V_T + 4}")
    for w in range(1, 4):
        e(f"v_fmac_f32 v{V_T + 4}, s{S_F + w}, v{V_T + 4 + w}")
    e(f"v_cvt_pk_bf16_f32 v{V_T + 4}, v{V_T + 4}, v{V_T + 4}")
    e("s_nop 1")
    build_A(g, V_A0, V_T + 4, 0)
    for rg in range(8):
        A = V_A0 if (rg & 1) == 0 else V_A1
        An = V_A1 if (rg & 1) == 0 else V_A0
        if rg == 0:
            e("s_nop 1")
        for cg in range(5):
            r = V_W + 4 * (rg * 5 + cg)
            acc = V_G + 4 * cg
            c = "0" if rg == 0 else f"v[{acc}:{acc + 3}]"
            e(f"v_mfma_f32_16x16x32_bf16 v[{acc}:{acc + 3}], v[{A}:{A + 3}], v[{r}:{r + 3}], {c}")
            if cg == 0 and rg + 1 < 8:
                build_A(g, An, V_T + 4, rg + 1)
    e("s_mov_b32 exec_hi, 0")
    e("s_nop 3")
    for cg in range(5):
        acc = V_G + 4 * cg
        e(f"ds_write_b128 v{V_T}, v[{acc}:{acc + 3}] offset:{L_GP + cg * 512}")
        if cg < 4:
            e("s_nop 0")
    e("s_mov_b32 exec_hi, -1")
    e("s_waitcnt lgkmcnt(0)")
    barrier(g)
    e(f"s_lshl_b32 s{S_T0}, s{S_RW}, 6")
    e(f"v_add_u32 v{V_T + 1}, s{S_T0}, v{V_LANE}")
    e(f"v_lshlrev_b32 v{V_T + 2}, 4, v{V_T + 1}")
    e(f"v_add_u32 v{V_T + 3}, v{V_T + 2}, v{V_LDS}")
    e(f"v_cmp_gt_u32 vcc, 160, v{V_T + 1}")
    e("s_and_saveexec_b64 s[42:43], vcc")
    e("s_cbranch_execz L_pub_done")
    for w in range(4):
        e(f"ds_read_b128 v[{V_T + 4 + 4 * w}:{V_T + 7 + 4 * w}], v{V_T + 3} offset:{L_GP + w * 2560}")
    e(f"s_mul_i32 s{S_T1}, s{S_BLK}, 2560")
    e(f"s_add_u32 s{S_T1}, s{S_T1}, {WS_PART}")
    e("s_waitcnt lgkmcnt(0)")
    for k in range(4):
        e(f"v_add_f32 v{V_T + 4 + k}, v{V_T + 4 + k}, v{V_T + 8 + k}")
        e(f"v_add_f32 v{V_T + 12 + k}, v{V_T + 12 + k}, v{V_T + 16 + k}")
    for k in range(4):
        e(f"v_add_f32 v{V_T + 4 + k}, v{V_T + 4 + k}, v{V_T + 12 + k}")
    for k in range(4):
        e(f"v_min_u32 v{V_T + 4 + k}, -2, v{V_T + 4 + k}")
    e(f"buffer_store_dwordx4 v[{V_T + 4}:{V_T + 7}], v{V_T + 2}, s[{SRD_WS}:{SRD_WS + 3}], s{S_T1} offen sc1")
    e("L_pub_done:")
    e("s_mov_b64 exec, -1")
    g.stamp(7)

    e("L_mlp:")
    e(f"s_and_b32 s{S_T0}, s2, 127")
    e(f"s_mul_i32 s{S_T0}, s{S_T0}, 20")
    e(f"v_add_u32 v{V_T}, s{S_T0}, v{V_LDS}")
    e(f"s_mov_b32 s{S_M}, 0xbdd2d3e8")
    e(f"s_mov_b32 s{S_M + 1}, 0xc0135761")
    e("s_waitcnt vmcnt(0)")
    barrier(g)
    tt = V_T + 2
    for k in range(5):
        e(f"ds_read_b32 v{tt + k}, v{V_T} offset:{L_T1 + 4 * k}")
    e(f"ds_read_b64 v[{V_T + 8}:{V_T + 9}], v{V_LDS} offset:{L_ST}")
    e("s_waitcnt lgkmcnt(0)")
    for k in range(5):
        e(f"v_sub_f32 v{tt + k}, v{tt + k}, v{V_T + 8}")
    for k in range(5):
        e(f"v_cvt_pk_bf16_f32 v{tt + k}, 0, v{tt + k}")
    for k in range(5):
        e(f"v_mul_f32 v{tt + k}, v{tt + k}, v{V_T + 9}")
    for k in range(5):
        e(f"v_cvt_pk_bf16_f32 v{tt + k}, 0, v{tt + k}")
    ac = V_T + 10
    u = V_T + 16
    z = V_T + 20
    for k in range(5):
        for i in range(4):
            e(f"v_mul_f32 v{u + i}, v{tt + k}, v{V_W1 + i}")
        for i in range(4):
            e(f"v_cvt_pk_bf16_f32 v{u + i}, 0, v{u + i}")
        for i in range(4):
            e(f"v_add_f32 v{u + i}, v{u + i}, v{V_B1 + i}")
        for i in range(4):
            e(f"v_cvt_pk_bf16_f32 v{u + i}, 0, v{u + i}")
        for i in range(4):
            e(f"v_mul_f32 v{z + i}, v{u + i}, v{u + i}")
        for i in range(4):
            e(f"v_mov_b32 v{z + 4}, s{S_M + 1}") if i == 0 and k == 0 else None
        for i in range(4):
            e(f"v_fma_f32 v{z + i}, v{z + i}, s{S_M}, v{z + 4}")
        for i in range(4):
            e(f"v_mul_f32 v{z + i}, v{z + i}, v{u + i}")
        for i in range(4):
            e(f"v_exp_f32 v{z + i}, v{z + i}")
        for i in range(4):
            e(f"v_add_f32 v{z + i}, 1.0, v{z + i}")
        for i in range(4):
            e(f"v_rcp_f32 v{z + i}, v{z + i}")
        for i in range(4):
            e(f"v_mul_f32 v{u + i}, v{u + i}, v{z + i}")
        for i in range(4):
            e(f"v_cvt_pk_bf16_f32 v{u + i}, 0, v{u + i}")
        for i in range(4):
            if i == 0:
                e(f"v_mul_f32 v{ac + k}, v{u}, v{V_W2}")
            else:
                e(f"v_fmac_f32 v{ac + k}, v{u + i}, v{V_W2 + i}")
    g.wave_reduce([(ac + k, "v_add_f32") for k in range(5)])
    e(f"s_lshl_b32 s{S_T1}, s{S_WAVE}, 5")
    e(f"v_add_u32 v{V_T + 1}, s{S_T1}, v{V_LDS}")
    e("s_lshl_b64 exec, 1, 63")
    e(f"ds_write_b128 v{V_T + 1}, v[{ac}:{ac + 3}] offset:{L_MP}")
    e(f"ds_write_b32 v{V_T + 1}, v{ac + 4} offset:{L_MP + 16}")
    e("s_mov_b64 exec, -1")
    e("s_waitcnt lgkmcnt(0)")
    barrier(g)
    if not P["DRY"]:
        e(f"s_cmp_lg_u32 s{S_WAVE}, 0")
        e("s_cbranch_scc1 L_fin")
    e(f"v_lshl_add_u32 v{V_T + 1}, v{V_LANE}, 2, v{V_LDS}")
    for w in range(8):
        e(f"ds_read_b32 v{V_T + 2 + w}, v{V_T + 1} offset:{L_MP + 32 * w}")
    e(f"s_lshr_b32 s{S_T0}, s{S_T0}, 1")
    e(f"v_lshl_add_u32 v{V_T + 10}, v{V_LANE}, 1, s{S_T0}")
    e(f"v_add_u32 v{V_T + 11}, v{V_T + 10}, v{V_LDS}")
    e(f"ds_read_u16 v{V_T + 11}, v{V_T + 11} offset:{L_HB}")
    g.srd(SRD_C, 36, 37, 2560)
    e(f"s_mul_i32 s{S_T1}, s{S_B}, 1280")
    e("s_waitcnt lgkmcnt(0)")
    for k in range(4):
        e(f"v_add_f32 v{V_T + 2 + k}, v{V_T + 2 + k}, v{V_T + 6 + k}")
    e(f"v_add_f32 v{V_T + 2}, v{V_T + 2}, v{V_T + 3}")
    e(f"v_add_f32 v{V_T + 4}, v{V_T + 4}, v{V_T + 5}")
    e("s_lshl_b32 s43, s26, 16")
    e(f"v_add_f32 v{V_T + 2}, v{V_T + 2}, v{V_T + 4}")
    e(f"v_lshlrev_b32 v{V_T + 11}, 16, v{V_T + 11}")
    e(f"v_cvt_pk_bf16_f32 v{V_T + 2}, 0, v{V_T + 2}")
    e(f"v_add_f32 v{V_T + 2}, s43, v{V_T + 2}")
    e(f"v_cvt_pk_bf16_f32 v{V_T + 2}, 0, v{V_T + 2}")
    e(f"v_add_f32 v{V_T + 2}, v{V_T + 11}, v{V_T + 2}")
    e(f"v_cvt_pk_bf16_f32 v{V_T + 2}, v{V_T + 2}, v{V_T + 2}")
    e("s_mov_b64 exec, 31")
    e(f"buffer_store_short v{V_T + 2}, v{V_T + 10}, s[{SRD_C}:{SRD_C + 3}], s{S_T1} offen")
    e("s_mov_b64 exec, -1")
    e("L_fin:")
    if P["STAMPS"]:
        g.stamp(15)
        e("s_waitcnt lgkmcnt(0)")
        e(f"s_add_u32 s{SRD_C}, s40, 0x10000000"); e(f"s_addc_u32 s{SRD_C + 1}, s41, 0")
        e(f"s_mov_b32 s{SRD_C + 2}, 0x100000"); e(f"s_mov_b32 s{SRD_C + 3}, 0x20000")
        e("s_lshl_b32 s10, s2, 7")
        e("s_mov_b64 exec, 1")
        hw0 = 0 if P["HFIRST"] else 4
        sw0 = 4 - hw0
        for wave, slots in [(hw0, [0, 1, 2, 3, 4, 5, 6, 7] + ([15] if hw0 == 0 else [])), (sw0, [8, 9, 10, 11, 12] + ([15] if sw0 == 0 else [])), (sw0 + 1, [13])]:
            l = g.lab("st")
            e(f"s_cmp_lg_u32 s{S_WAVE}, {wave}")
            e(f"s_cbranch_scc1 {l}")
            for k in slots:
                e(f"v_mov_b32 v{V_T}, s{64 + 2 * k}"); e(f"v_mov_b32 v{V_T + 1}, s{65 + 2 * k}")
                e(f"buffer_store_dwordx2 v[{V_T}:{V_T + 1}], off, s[{SRD_C}:{SRD_C + 3}], s10 offset:{8 * k}")
            e(f"{l}:")
    e("L_end:")
    e("s_endpgm")
    e('.section .rodata,"a"'); e(".p2align 6"); e(f".amdhsa_kernel {NAME}")
    e("  .amdhsa_next_free_vgpr 256"); e("  .amdhsa_next_free_sgpr 102"); e("  .amdhsa_accum_offset 256")
    e("  .amdhsa_group_segment_fixed_size 0"); e("  .amdhsa_kernarg_size 104"); e("  .amdhsa_user_sgpr_count 2")
    e("  .amdhsa_user_sgpr_kernarg_segment_ptr 1"); e("  .amdhsa_system_sgpr_workgroup_id_x 1")
    e("  .amdhsa_float_denorm_mode_32 3"); e("  .amdhsa_float_denorm_mode_16_64 3")
    e(".end_amdhsa_kernel")
    return "\n".join(x for x in g.o if x) + "\n"


def parse(a):
    kw = {}
    for x in a.split(","):
        if not x:
            continue
        k, v = x.split("=")
        kw[k] = v.replace("+", " ") if k in ("WPOL", "KPOL") else int(v)
    return kw


if __name__ == "__main__":
    out = sys.argv[1]
    kw = parse(sys.argv[2]) if len(sys.argv) > 2 else {}
    open(out, "w").write(gen(**kw))
```

```python
import sys
NAME = "sequential_preLN__mha_block_cached__mixer_token_mlp__decode_kernel"

DEF = dict(
    D=32,
    PS=6,
    HFIRST=1,
    WQ_BURST=12,
    WQ_P=12,
    WO_P=3,
    WPOL="nt",
    KPOL="nt",
    VPOL="",
    R=8,
    STAMPS=0,
    DRY=0,
    SPIN=200000,
)

WS_STAT = 0
WS_HV = 0x4000
WS_PART = 0x20000
WS_SIZE = WS_PART + 256 * 2560
L_QP = 0
L_OP = 2048
L_GP = 4096
L_T1 = L_GP + 10240
L_HB = L_T1 + 2560
L_ST = L_HB + 1280
L_MP = L_ST + 64
L_SZ = L_MP + 256
L_SZ = (L_SZ + 255) // 256 * 256

LOG2E = 0x3FB8AA3B
SCALE = 0x3DB504F3
INV640 = 0x3ACCCCCD
EPS = 0x3727C5AC
DPPF = "row_mask:0xf bank_mask:0xf"


class G:
    def __init__(self, P):
        self.P = P
        self.o = []
        self.q = []
        self.nlab = 0

    def e(self, s):
        self.o.append(s)

    def vm(self, s, tag=None):
        self.o.append(s)
        self.q.append(tag)

    def wait_tag(self, tag):
        idx = [k for k, t in enumerate(self.q) if t == tag]
        if not idx:
            return False
        i = max(idx)
        n = len(self.q) - 1 - i
        assert n <= 63
        self.e(f"s_waitcnt vmcnt({n})")
        self.q = self.q[i + 1:]
        return True

    def wait_n(self, n):
        if len(self.q) > n:
            self.e(f"s_waitcnt vmcnt({n})")
            self.q = self.q[len(self.q) - n:] if n else []

    def lab(self, base):
        self.nlab += 1
        return f"L_{base}_{self.nlab}"

    def stamp(self, k):
        if self.P["STAMPS"]:
            self.e(f"s_memrealtime s[{64 + 2 * k}:{65 + 2 * k}]")

    def srd(self, d, blo, bhi, size):
        self.e(f"s_mov_b32 s{d}, s{blo}")
        self.e(f"s_mov_b32 s{d + 1}, s{bhi}")
        self.e(f"s_mov_b32 s{d + 2}, {size}")
        self.e(f"s_mov_b32 s{d + 3}, 0x20000")

    def wave_reduce(self, regs_ops):
        steps = ["quad_perm:[1,0,3,2] " + DPPF, "quad_perm:[2,3,0,1] " + DPPF,
                 "row_half_mirror " + DPPF, "row_mirror " + DPPF,
                 "row_bcast:15 row_mask:0xa bank_mask:0xf", "row_bcast:31 row_mask:0xc bank_mask:0xf"]
        n = len(regs_ops)
        self.e("s_nop 1")
        for st in steps:
            for (r, op) in regs_ops:
                self.e(f"{op}_dpp v{r}, v{r}, v{r} {st}")
            if n < 3:
                self.e(f"s_nop {2 - n}" if n < 3 and 2 - n >= 0 else "")
        self.e("s_nop 0")


S_WAVE = 3
S_RW = 4
S_H = 5
S_B = 6
S_SPLIT = 7
S_BLK = 8
S_OFF = 9
S_T0, S_T1, S_T2, S_T3 = 10, 11, 12, 13
S_DRY = 14
S_SPIN = 15
SRD_A = 44
SRD_B = 48
SRD_X = 52
SRD_WS = 56
SRD_C = 60
S_F = 96
S_M = 42
V_LANE = 1
V_OFFA = 2
V_OFFB = 3
V_MASK = 4
V_W1 = 8
V_B1 = 12
V_W2 = 16
V_A0 = 20
V_A1 = 24
V_T = 28
V_LDS = 64
V_XR = 66
V_QB = 68
V_SC = 84
V_ACC = 92
V_MX = 108
V_RING = 128
V_XC = 68
V_G = 72
V_W = 96


def ln_stats(g, vals, sC, vS1, vS2, vtmp, out_m, out_r):
    e = g.e
    for i, v in enumerate(vals):
        t = vtmp + (i & 3)
        if sC is not None:
            e(f"v_subrev_f32 v{t}, s{sC}, v{v}")
        else:
            t = v
        if i == 0:
            e(f"v_mov_b32 v{vS1}, v{t}")
            e(f"v_mul_f32 v{vS2}, v{t}, v{t}")
        else:
            e(f"v_add_f32 v{vS1}, v{vS1}, v{t}")
            e(f"v_fmac_f32 v{vS2}, v{t}, v{t}")
    g.wave_reduce([(vS1, "v_add_f32"), (vS2, "v_add_f32")])
    e(f"v_readlane_b32 s{S_T0}, v{vS1}, 63")
    e(f"v_readlane_b32 s{S_T1}, v{vS2}, 63")
    e(f"s_mov_b32 s{S_T2}, {INV640:#x}")
    e("s_nop 0")
    e(f"v_mov_b32 v{vS1}, s{S_T0}")
    e(f"v_mov_b32 v{vS2}, s{S_T1}")
    e(f"v_mul_f32 v{vS1}, s{S_T2}, v{vS1}")
    e(f"v_mul_f32 v{vS2}, s{S_T2}, v{vS2}")
    e(f"v_fma_f32 v{vS2}, -v{vS1}, v{vS1}, v{vS2}")
    if sC is not None:
        e(f"v_add_f32 v{vS1}, s{sC}, v{vS1}")
    e(f"v_max_f32 v{vS2}, 0, v{vS2}")
    e(f"v_cvt_pk_bf16_f32 v{out_m}, 0, v{vS1}")
    e(f"v_cvt_pk_bf16_f32 v{vS2}, 0, v{vS2}")
    e(f"v_add_f32 v{vS2}, {EPS:#x}, v{vS2}")
    e(f"v_cvt_pk_bf16_f32 v{vS2}, 0, v{vS2}")
    e(f"v_sqrt_f32 v{vS2}, v{vS2}")
    e("s_nop 0")
    e(f"v_cvt_pk_bf16_f32 v{vS2}, 0, v{vS2}")
    e(f"v_rcp_f32 v{out_r}, v{vS2}")
    e("s_nop 0")


def build_A(g, dst, src, c):
    for j in range(4):
        g.e(f"v_and_b32_dpp v{dst + j}, v{src}, v{V_MASK + j} row_newbcast:{c} {DPPF}")


def mlp_loads(g):
    e = g.e
    e(f"v_lshlrev_b32 v{V_T}, 1, v0")
    for k, (lo, base) in enumerate([(28, V_W1), (30, V_B1), (32, V_W2)]):
        g.srd(SRD_C, lo, lo + 1, 3456)
        for i in range(4):
            e(f"v_mov_b32 v{base + i}, 0")
        for i in range(4):
            g.vm(f"buffer_load_short_d16_hi v{base + i}, v{V_T}, s[{SRD_C}:{SRD_C + 3}], 0 offen offset:{i * 1024}", "mlp")


def barrier(g):
    if g.P["DRY"]:
        l = g.lab("nb")
        g.e(f"s_cmp_lg_u32 s{S_DRY}, 0")
        g.e(f"s_cbranch_scc1 {l}")
        g.e("s_barrier")
        g.e(f"{l}:")
    else:
        g.e("s_barrier")


def poll_loop(g, loads, words, sleep=0):
    e = g.e
    top = g.lab("poll")
    done = g.lab("pdone")
    e(f"s_mov_b32 s{S_SPIN}, {g.P['SPIN']}")
    e(f"{top}:")
    for l in loads:
        e(l)
    e("s_waitcnt vmcnt(0)")
    t = V_T + 30
    w = list(words)
    if len(w) == 1:
        e(f"v_cmp_eq_u32 vcc, -1, v{w[0]}")
    else:
        first = True
        while w:
            if first:
                if len(w) >= 3:
                    e(f"v_max3_u32 v{t}, v{w[0]}, v{w[1]}, v{w[2]}"); w = w[3:]
                else:
                    e(f"v_max_u32 v{t}, v{w[0]}, v{w[1]}"); w = w[2:]
                first = False
            elif len(w) >= 2:
                e(f"v_max3_u32 v{t}, v{t}, v{w[0]}, v{w[1]}"); w = w[2:]
            else:
                e(f"v_max_u32 v{t}, v{t}, v{w[0]}"); w = w[1:]
        e(f"v_cmp_eq_u32 vcc, -1, v{t}")
    e(f"s_sub_u32 s{S_SPIN}, s{S_SPIN}, 1")
    e(f"s_cbranch_scc1 {done}")
    e(f"s_cbranch_vccz {done}")
    if sleep:
        e(f"s_sleep {sleep}")
    e(f"s_branch {top}")
    e(f"{done}:")
    g.q = []


def gen(**kw):
    P = dict(DEF); P.update(kw)
    g = G(P); e = g.e
    D = P["D"]; R = P["R"]
    lds_total = L_SZ * (2 if P["DRY"] else 1)
    e(f"; @launch grid=(256,1,1) block=(512,1,1) lds={lds_total}")
    e('.amdgcn_target "amdgcn-amd-amdhsa--gfx950"')
    e(".text"); e(f".globl {NAME}"); e(".p2align 8"); e(f".type {NAME},@function"); e(f"{NAME}:")
    e("s_cmp_ge_u32 s2, 256")
    e("s_cbranch_scc1 L_end")
    g.stamp(0)
    e("s_load_dwordx16 s[16:31], s[0:1], 0")
    e("s_load_dwordx8 s[32:39], s[0:1], 64")
    e("s_load_dwordx2 s[40:41], s[0:1], 96")
    e(f"v_lshrrev_b32 v{V_T}, 6, v0")
    e(f"v_and_b32 v{V_LANE}, 63, v0")
    e(f"v_readfirstlane_b32 s{S_WAVE}, v{V_T}")
    e(f"s_and_b32 s{S_H}, s2, 31")
    e(f"s_lshr_b32 s{S_B}, s2, 7")
    e(f"s_bfe_u32 s{S_SPLIT}, s2, 0x20005")
    e(f"s_lshl_b32 s{S_BLK}, s{S_H}, 2")
    e(f"s_add_u32 s{S_BLK}, s{S_BLK}, s{S_SPLIT}")
    e(f"s_lshl_b32 s{S_T0}, s{S_B}, 7")
    e(f"s_add_u32 s{S_BLK}, s{S_BLK}, s{S_T0}")
    e(f"s_and_b32 s{S_RW}, s{S_WAVE}, 3")
    e(f"s_mov_b32 s{S_DRY}, 0")
    e(f"v_mov_b32 v{V_LDS}, 0")
    e(f"v_lshrrev_b32 v{V_T + 1}, 4, v{V_LANE}")
    e(f"v_and_b32 v{V_T + 2}, 15, v{V_LANE}")
    e(f"s_cmp_lt_u32 s{S_WAVE}, 4")
    e(f"s_cbranch_scc{1 if P['HFIRST'] else 0} L_helper")

    e(f"v_bfe_u32 v{V_T + 3}, v{V_LANE}, 2, 2")
    e(f"v_and_b32 v{V_T + 4}, 3, v{V_LANE}")
    e(f"s_lshl_b32 s{S_T0}, s{S_RW}, 10")
    e(f"v_lshlrev_b32 v{V_OFFA}, 8, v{V_T + 3}")
    e(f"v_lshl_add_u32 v{V_OFFA}, v{V_T + 1}, 6, v{V_OFFA}")
    e(f"v_lshl_add_u32 v{V_OFFA}, v{V_T + 4}, 4, v{V_OFFA}")
    e(f"v_add_u32 v{V_OFFA}, s{S_T0}, v{V_OFFA}")
    e(f"v_lshl_add_u32 v{V_OFFB}, v{V_LANE}, 4, s{S_T0}")
    e(f"s_lshl_b32 s{S_T1}, s{S_BLK}, 19")
    e(f"s_mov_b32 s{S_OFF}, 0")
    e("s_waitcnt lgkmcnt(0)")
    e(f"s_add_u32 s{SRD_A}, s18, s{S_T1}"); e(f"s_addc_u32 s{SRD_A + 1}, s19, 0")
    e(f"s_mov_b32 s{SRD_A + 2}, 0x80000"); e(f"s_mov_b32 s{SRD_A + 3}, 0x20000")
    e(f"s_add_u32 s{SRD_B}, s20, s{S_T1}"); e(f"s_addc_u32 s{SRD_B + 1}, s21, 0")
    e(f"s_mov_b32 s{SRD_B + 2}, 0x80000"); e(f"s_mov_b32 s{SRD_B + 3}, 0x20000")
    NL = 128

    def issue(i):
        r = V_RING + (i % D) * 4
        g.wait_n(P["PS"] - 1)
        if i == NL:
            e(f"s_mov_b32 s{S_OFF}, 0")
        srd, off = (SRD_A, V_OFFA) if i < NL else (SRD_B, V_OFFB)
        g.vm(f"buffer_load_dwordx4 v[{r}:{r + 3}], v{off}, s[{srd}:{srd + 3}], s{S_OFF} offen {P['KPOL'] if i < NL else P['VPOL']}", ("kv", i))
        e(f"s_addk_i32 s{S_OFF}, 0x1000")

    for i in range(D):
        issue(i)
    g.stamp(8)
    def common_setup():
        e("s_load_dword s26, s[34:35], 0")
        g.srd(SRD_WS, 40, 41, WS_SIZE)
        g.srd(SRD_X, 16, 17, 2560)
        e(f"v_and_b32 v{V_T + 5}, 1, v{V_LANE}")
        e(f"v_mov_b32 v{V_T + 6}, 0xffff")
        e(f"v_cmp_eq_u32 vcc, 1, v{V_T + 5}")
        e(f"v_mov_b32 v{V_T + 7}, 0xffff0000")
        e(f"v_bfe_u32 v{V_T + 8}, v{V_LANE}, 1, 3")
        e(f"v_cndmask_b32 v{V_T + 6}, v{V_T + 6}, v{V_T + 7}, vcc")
        for j in range(4):
            e(f"v_cmp_eq_u32 vcc, {j}, v{V_T + 8}")
            e("s_nop 1")
            e(f"v_cndmask_b32 v{V_MASK + j}, 0, v{V_T + 6}, vcc")
    common_setup()
    mlp_loads(g)
    e(f"s_lshl_b32 s{S_T0}, s2, 4")
    e(f"v_and_b32 v{V_T + 5}, 1, v{V_LANE}")
    e(f"v_lshl_add_u32 v{V_T + 5}, v{V_T + 5}, 3, s{S_T0}")
    g.vm(f"buffer_load_dwordx2 v[{V_XR}:{V_XR + 1}], v{V_T + 5}, s[{SRD_X}:{SRD_X + 3}], 0 offen", "xr")
    e(f"s_mov_b32 s96, 0x22222222"); e(f"s_mov_b32 s97, 0x22222222")
    e(f"s_mov_b32 s98, 0x44444444"); e(f"s_mov_b32 s99, 0x44444444")
    e(f"s_mov_b32 s100, 0x88888888"); e(f"s_mov_b32 s101, 0x88888888")
    e(f"v_lshlrev_b32 v{V_T + 5}, 7, v{V_T + 1}")
    e(f"v_lshl_add_u32 v{V_T + 5}, v{V_T + 4}, 5, v{V_T + 5}")
    e("s_barrier")
    g.stamp(9)
    q0 = V_T + 4
    e(f"v_mov_b32 v{V_MX}, v{V_T + 5}")
    for w in range(4):
        e(f"ds_read_b128 v[{q0 + 8 * w}:{q0 + 8 * w + 3}], v{V_MX} offset:{L_QP + w * 512}")
        e(f"ds_read_b128 v[{q0 + 8 * w + 4}:{q0 + 8 * w + 7}], v{V_MX} offset:{L_QP + w * 512 + 16}")
    e("s_waitcnt lgkmcnt(0)")
    for i in range(8):
        e(f"v_add_f32 v{q0 + i}, v{q0 + i}, v{q0 + 8 + i}")
        e(f"v_add_f32 v{q0 + 16 + i}, v{q0 + 16 + i}, v{q0 + 24 + i}")
    for i in range(8):
        e(f"v_add_f32 v{q0 + i}, v{q0 + i}, v{q0 + 16 + i}")
    for j in range(4):
        e(f"v_cvt_pk_bf16_f32 v{q0 + 8 + j}, v{q0 + 2 * j}, v{q0 + 2 * j + 1}")
    for J in range(4):
        e(f"v_cmp_eq_u32 vcc, {J}, v{V_T + 3}")
        e("s_nop 1")
        for j in range(4):
            e(f"v_cndmask_b32 v{V_QB + 4 * J + j}, 0, v{q0 + 8 + j}, vcc")
    e(f"s_mov_b32 s{S_M}, {SCALE:#x}")
    e("s_nop 0")
    for gi in range(8):
        for L in range(16):
            i = gi * 16 + L
            a, J = L >> 2, L & 3
            r = V_RING + (i % D) * 4
            acc = V_ACC + 4 * a
            g.wait_tag(("kv", i))
            c = "0" if J == 0 else f"v[{acc}:{acc + 3}]"
            e(f"v_mfma_f32_16x16x32_bf16 v[{acc}:{acc + 3}], v[{r}:{r + 3}], v[{V_QB + 4 * J}:{V_QB + 4 * J + 3}], {c}")
            if i + D < 2 * NL:
                issue(i + D)
        e("s_nop 3")
        for a in range(4):
            acc = V_ACC + 4 * a
            t = V_T + a
            e(f"v_mov_b32_dpp v{t}, v{acc} quad_perm:[0,0,0,0] {DPPF}")
            for k in range(1, 4):
                e(f"v_add_f32_dpp v{t}, v{acc + k}, v{t} quad_perm:[{k},{k},{k},{k}] {DPPF}")
        e(f"v_cndmask_b32 v{V_T}, v{V_T}, v{V_T + 1}, s[96:97]")
        e(f"v_cndmask_b32 v{V_T}, v{V_T}, v{V_T + 2}, s[98:99]")
        e(f"v_cndmask_b32 v{V_T}, v{V_T}, v{V_T + 3}, s[100:101]")
        e(f"v_cvt_pk_bf16_f32 v{V_T}, 0, v{V_T}")
        e(f"v_mul_f32 v{V_T}, s{S_M}, v{V_T}")
        e(f"v_cvt_pk_bf16_f32 v{V_SC + gi}, 0, v{V_T}")
        if gi == 0:
            e(f"v_mov_b32 v{V_MX}, v{V_SC}")
        else:
            e(f"v_max_f32 v{V_MX}, v{V_MX}, v{V_SC + gi}")
    g.stamp(10)
    g.wave_reduce([(V_MX, "v_max_f32")])
    e(f"v_readlane_b32 s{S_M}, v{V_MX}, 63")
    e(f"s_mov_b32 s{S_M + 1}, {LOG2E:#x}")
    e("s_nop 0")
    for gi in range(8):
        e(f"v_subrev_f32 v{V_T + gi}, s{S_M}, v{V_SC + gi}")
    for gi in range(8):
        e(f"v_mul_f32 v{V_T + gi}, s{S_M + 1}, v{V_T + gi}")
    for gi in range(8):
        e(f"v_exp_f32 v{V_T + gi}, v{V_T + gi}")
    e("s_nop 0")
    for gi in range(8):
        e(f"v_cvt_pk_bf16_f32 v{V_SC + gi}, v{V_T + gi}, v{V_T + gi}")
    for gi in range(4):
        e(f"v_add_f32 v{V_T + gi}, v{V_T + gi}, v{V_T + 4 + gi}")
    e(f"v_add_f32 v{V_T}, v{V_T}, v{V_T + 1}")
    e(f"v_add_f32 v{V_T + 2}, v{V_T + 2}, v{V_T + 3}")
    e(f"v_add_f32 v{V_T + 9}, v{V_T}, v{V_T + 2}")
    build_A(g, V_A0, V_SC, 0)
    g.wave_reduce([(V_T + 9, "v_add_f32")])
    e(f"v_mov_b32 v{V_T + 8}, s{S_M}")
    e(f"v_min_u32 v{V_T + 9}, -2, v{V_T + 9}")
    e(f"s_lshl_b32 s{S_T0}, s{S_BLK}, 5")
    e(f"s_lshl_b32 s{S_T1}, s{S_RW}, 3")
    e(f"s_add_u32 s{S_T0}, s{S_T0}, s{S_T1}")
    e("s_lshl_b64 exec, 1, 63")
    g.vm(f"buffer_store_dwordx2 v[{V_T + 8}:{V_T + 9}], off, s[{SRD_WS}:{SRD_WS + 3}], s{S_T0} offset:{WS_STAT} sc1", "stat")
    e("s_mov_b64 exec, -1")
    for L in range(NL):
        i = NL + L
        r = V_RING + (i % D) * 4
        A = V_A0 if (L & 1) == 0 else V_A1
        An = V_A1 if (L & 1) == 0 else V_A0
        if not g.wait_tag(("kv", i)) and i + D - 1 >= 2 * NL:
            e("s_nop 0")
        c = "0" if L == 0 else f"v[{V_ACC}:{V_ACC + 3}]"
        e(f"v_mfma_f32_16x16x32_bf16 v[{V_ACC}:{V_ACC + 3}], v[{A}:{A + 3}], v[{r}:{r + 3}], {c}")
        if L + 1 < NL:
            n = (L + 1) & 15
            build_A(g, An, V_SC + ((L + 1) >> 4), 4 * (n & 3) + (n >> 2))
        if i + D < 2 * NL:
            issue(i + D)
        else:
            e("s_nop 0")
    g.stamp(11)
    g.q = []
    e("L_tail_S:")
    e(f"v_and_b32 v{V_T}, 15, v{V_LANE}")
    e(f"v_lshrrev_b32 v{V_T + 1}, 4, v{V_LANE}")
    e(f"s_lshl_b32 s{S_T0}, s{S_RW}, 9")
    e(f"v_lshl_add_u32 v{V_T}, v{V_T}, 5, v{V_LDS}")
    e(f"v_lshl_add_u32 v{V_T}, v{V_T + 1}, 4, v{V_T}")
    e(f"v_add_u32 v{V_T}, s{S_T0}, v{V_T}")
    e("s_mov_b32 exec_hi, 0")
    e("s_nop 1")
    e(f"ds_write_b128 v{V_T}, v[{V_ACC}:{V_ACC + 3}] offset:{L_OP}")
    e("s_mov_b32 exec_hi, -1")
    e("s_waitcnt lgkmcnt(0)")
    barrier(g)
    barrier(g)
    e(f"s_cmp_eq_u32 s{S_RW}, 0")
    e("s_cbranch_scc1 L_reducer")
    e(f"s_cmp_eq_u32 s{S_RW}, 1")
    e("s_cbranch_scc1 L_hop2")
    e("s_branch L_mlp")

    e("L_reducer:")
    e("s_cmp_ge_u32 s2, 160")
    e("s_cbranch_scc1 L_red_done")
    e("s_cmp_ge_u32 s2, 80")
    e(f"s_cselect_b32 s{S_T0}, {128 * 2560 - 80 * 32}, 0")
    e(f"s_lshl_b32 s{S_T1}, s2, 5")
    e(f"s_add_u32 s{S_T0}, s{S_T0}, s{S_T1}")
    e(f"s_add_u32 s{S_T0}, s{S_T0}, {WS_PART}")
    e(f"v_lshrrev_b32 v{V_T}, 1, v{V_LANE}")
    e(f"v_mul_u32_u24 v{V_T}, 2560, v{V_T}")
    e(f"v_and_b32 v{V_T + 1}, 1, v{V_LANE}")
    e(f"v_lshl_add_u32 v{V_T}, v{V_T + 1}, 4, v{V_T}")
    e(f"s_add_u32 s{S_T1}, s{S_T0}, {32 * 2560}")
    e(f"s_add_u32 s{S_T2}, s{S_T0}, {64 * 2560}")
    e(f"s_add_u32 s{S_T3}, s{S_T0}, {96 * 2560}")
    d0 = V_T + 4
    loads = [f"buffer_load_dwordx4 v[{d0 + 4 * k}:{d0 + 4 * k + 3}], v{V_T}, s[{SRD_WS}:{SRD_WS + 3}], s{S_T0 + k} offen sc1" for k in range(4)]
    poll_loop(g, loads, [d0 + k for k in range(16)])
    g.stamp(12)
    for k in range(4):
        e(f"v_add_f32 v{d0 + k}, v{d0 + k}, v{d0 + 4 + k}")
        e(f"v_add_f32 v{d0 + 8 + k}, v{d0 + 8 + k}, v{d0 + 12 + k}")
    for k in range(4):
        e(f"v_add_f32 v{d0 + k}, v{d0 + k}, v{d0 + 8 + k}")
    for st in ["quad_perm:[2,3,0,1]", "row_ror:4", "row_ror:8"]:
        for k in range(4):
            e(f"v_add_f32_dpp v{d0 + k}, v{d0 + k}, v{d0 + k} {st} {DPPF}")
    for sw in ["v_permlane16_swap_b32", "v_permlane32_swap_b32"]:
        for k in range(4):
            e(f"v_mov_b32 v{d0 + 4 + k}, v{d0 + k}")
        for k in range(4):
            e(f"{sw} v{d0 + k}, v{d0 + 4 + k}")
        e("s_nop 0")
        for k in range(4):
            e(f"v_add_f32 v{d0 + k}, v{d0 + k}, v{d0 + 4 + k}")
    e(f"v_lshlrev_b32 v{d0 + 4}, 16, v{V_XR}")
    e(f"v_and_b32 v{d0 + 5}, 0xffff0000, v{V_XR}")
    e(f"v_lshlrev_b32 v{d0 + 6}, 16, v{V_XR + 1}")
    e(f"v_and_b32 v{d0 + 7}, 0xffff0000, v{V_XR + 1}")
    for k in range(4):
        e(f"v_cvt_pk_bf16_f32 v{d0 + k}, 0, v{d0 + k}")
    for k in range(4):
        e(f"v_add_f32 v{d0 + k}, v{d0 + k}, v{d0 + 4 + k}")
    e(f"v_cvt_pk_bf16_f32 v{d0 + 8}, v{d0}, v{d0 + 1}")
    e(f"v_cvt_pk_bf16_f32 v{d0 + 9}, v{d0 + 2}, v{d0 + 3}")
    e(f"v_lshlrev_b32 v{V_T + 1}, 3, v{V_T + 1}")
    e(f"v_sub_u32 v{V_T}, v{V_T}, v{V_T + 1}")
    e(f"v_min_u32 v{d0 + 8}, -2, v{d0 + 8}")
    e(f"v_min_u32 v{d0 + 9}, -2, v{d0 + 9}")
    e(f"s_lshl_b32 s{S_T0}, s2, 4")
    e(f"s_add_u32 s{S_T0}, s{S_T0}, {WS_HV}")
    if 2 * R < 64:
        e(f"s_bfm_b64 exec, {2 * R}, 0")
    e(f"buffer_store_dwordx2 v[{d0 + 8}:{d0 + 9}], v{V_T}, s[{SRD_WS}:{SRD_WS + 3}], s{S_T0} offen sc1")
    e("s_mov_b64 exec, -1")
    e("L_red_done:")
    if P["DRY"]:
        e(f"s_cmp_lg_u32 s{S_DRY}, 0")
        e("s_cbranch_scc1 L_hop2")
    e("s_branch L_mlp")

    e("L_hop2:")
    e(f"s_and_b32 s{S_T0}, s2, {R - 1}")
    e(f"s_mul_i32 s{S_T0}, s{S_T0}, 2560")
    e(f"s_mul_i32 s{S_T1}, s{S_B}, 1280")
    e(f"s_add_u32 s{S_T0}, s{S_T0}, s{S_T1}")
    e(f"s_add_u32 s{S_T0}, s{S_T0}, {WS_HV}")
    e(f"v_lshlrev_b32 v{V_T}, 4, v{V_LANE}")
    e(f"v_lshlrev_b32 v{V_T + 1}, 2, v{V_LANE}")
    h0 = V_T + 4
    loads = [f"buffer_load_dwordx4 v[{h0}:{h0 + 3}], v{V_T}, s[{SRD_WS}:{SRD_WS + 3}], s{S_T0} offen sc1",
             f"buffer_load_dword v{h0 + 4}, v{V_T + 1}, s[{SRD_WS}:{SRD_WS + 3}], s{S_T0} offen offset:1024 sc1"]
    poll_loop(g, loads, [h0 + k for k in range(5)])
    g.stamp(13)
    f0 = V_T + 12
    for k in range(5):
        e(f"v_lshlrev_b32 v{f0 + 2 * k}, 16, v{h0 + k}")
        e(f"v_and_b32 v{f0 + 2 * k + 1}, 0xffff0000, v{h0 + k}")
    e(f"v_add_u32 v{V_T}, v{V_T}, v{V_LDS}")
    e(f"v_add_u32 v{V_T + 1}, v{V_T + 1}, v{V_LDS}")
    e(f"v_readfirstlane_b32 s{S_M}, v{f0}")
    e(f"ds_write_b128 v{V_T}, v[{h0}:{h0 + 3}] offset:{L_HB}")
    e(f"ds_write_b32 v{V_T + 1}, v{h0 + 4} offset:{L_HB + 1024}")
    vS1, vS2, vtm, vm_, vr_ = V_T + 22, V_T + 23, V_T + 24, V_T + 28, V_T + 29
    ln_stats(g, [f0 + k for k in range(10)], S_M, vS1, vS2, vtm, vm_, vr_)
    for k in range(10):
        e(f"v_sub_f32 v{f0 + k}, v{f0 + k}, v{vm_}")
    for k in range(10):
        e(f"v_cvt_pk_bf16_f32 v{f0 + k}, 0, v{f0 + k}")
    for k in range(10):
        e(f"v_mul_f32 v{f0 + k}, v{f0 + k}, v{vr_}")
    for k in range(10):
        e(f"v_cvt_pk_bf16_f32 v{f0 + k}, 0, v{f0 + k}")
    e(f"v_lshl_add_u32 v{V_T}, v{V_LANE}, 5, v{V_LDS}")
    e(f"v_lshl_add_u32 v{V_T + 1}, v{V_LANE}, 3, v{V_LDS}")
    e(f"ds_write_b128 v{V_T}, v[{f0}:{f0 + 3}] offset:{L_T1}")
    e(f"ds_write_b128 v{V_T}, v[{f0 + 4}:{f0 + 7}] offset:{L_T1 + 16}")
    e(f"ds_write_b64 v{V_T + 1}, v[{f0 + 8}:{f0 + 9}] offset:{L_T1 + 2048}")
    ln_stats(g, [f0 + k for k in range(10)], None, vS1, vS2, vtm, vm_, vr_)
    e(f"ds_write_b64 v{V_LDS}, v[{vm_}:{vr_}] offset:{L_ST}")
    e("s_waitcnt lgkmcnt(0)")
    e("s_branch L_mlp")

    e("L_helper:")
    g.q = []
    e(f"s_mul_i32 s{S_T0}, s{S_B}, 1280")
    e(f"v_lshl_add_u32 v{V_T + 3}, v{V_LANE}, 2, s{S_T0}")
    e(f"s_mul_i32 s{S_T1}, s{S_RW}, 320")
    e(f"s_add_u32 s{S_T1}, s{S_T1}, s{S_T0}")
    e(f"v_lshlrev_b32 v{V_T + 4}, 3, v{V_T + 2}")
    e(f"v_lshl_add_u32 v{V_T + 4}, v{V_T + 1}, 1, v{V_T + 4}")
    e(f"v_add_u32 v{V_T + 4}, s{S_T1}, v{V_T + 4}")
    e(f"s_mul_i32 s{S_T2}, s{S_RW}, {160 * 8192}")
    e(f"v_lshlrev_b32 v{V_OFFA}, 13, v{V_T + 1}")
    e(f"v_lshl_add_u32 v{V_OFFA}, v{V_T + 2}, 4, v{V_OFFA}")
    e(f"v_add_u32 v{V_OFFA}, s{S_T2}, v{V_OFFA}")
    e(f"s_mul_i32 s{S_T2}, s{S_RW}, {32 * 1280}")
    e(f"v_mul_u32_u24 v{V_OFFB}, 1280, v{V_T + 1}")
    e(f"v_lshl_add_u32 v{V_OFFB}, v{V_T + 2}, 4, v{V_OFFB}")
    e(f"v_add_u32 v{V_OFFB}, s{S_T2}, v{V_OFFB}")
    for r in range(3):
        e(f"v_mov_b32 v{V_XC + r}, 0")
    e(f"s_lshl_b32 s{S_T2}, s{S_H}, 8")
    e(f"s_mul_i32 s{S_T3}, s{S_H}, {128 * 1280}")
    e(f"s_mov_b32 s{S_OFF}, 0")
    e("s_waitcnt lgkmcnt(0)")
    g.srd(SRD_X, 16, 17, 2560)
    x0 = V_T + 12
    for k in range(5):
        g.vm(f"buffer_load_dword v{x0 + k}, v{V_T + 3}, s[{SRD_X}:{SRD_X + 3}], 0 offen offset:{k * 256}", "x")
    for r in range(3):
        g.vm(f"buffer_load_short_d16_hi v{V_XC + r}, v{V_T + 4}, s[{SRD_X}:{SRD_X + 3}], 0 offen offset:{r * 128}", "x")
    e(f"s_add_u32 s{SRD_A}, s22, s{S_T2}"); e(f"s_addc_u32 s{SRD_A + 1}, s23, 0")
    e(f"s_sub_u32 s{SRD_A + 2}, {640 * 8192}, s{S_T2}"); e(f"s_mov_b32 s{SRD_A + 3}, 0x20000")
    e(f"s_add_u32 s{SRD_B}, s24, s{S_T3}"); e(f"s_addc_u32 s{SRD_B + 1}, s25, 0")
    e(f"s_mov_b32 s{SRD_B + 2}, {128 * 1280}"); e(f"s_mov_b32 s{SRD_B + 3}, 0x20000")

    def wq_issue(j):
        r = V_W + 4 * j
        g.vm(f"buffer_load_dwordx4 v[{r}:{r + 3}], v{V_OFFA}, s[{SRD_A}:{SRD_A + 3}], s{S_OFF} offen {P['WPOL']}", ("wq", j))
        e(f"s_add_u32 s{S_OFF}, s{S_OFF}, 0x8000")

    nb = P["WQ_BURST"]
    for j in range(nb):
        wq_issue(j)
    g.stamp(1)
    common_setup()
    e(f"v_mov_b32 v{V_A0}, -1"); e(f"v_mov_b32 v{V_A0 + 1}, -1"); e(f"v_mov_b32 v{V_A0 + 2}, -1"); e(f"v_mov_b32 v{V_A0 + 3}, -1")
    e(f"s_lshl_b32 s{S_T0}, s{S_RW}, 6")
    e(f"v_add_u32 v{V_T + 5}, s{S_T0}, v{V_LANE}")
    e(f"v_lshlrev_b32 v{V_T + 6}, 4, v{V_T + 5}")
    e(f"s_mul_i32 s{S_T1}, s{S_BLK}, 2560")
    e(f"s_add_u32 s{S_T1}, s{S_T1}, {WS_PART}")
    e(f"v_cmp_gt_u32 vcc, 160, v{V_T + 5}")
    l_s = g.lab("ini")
    e("s_and_saveexec_b64 s[42:43], vcc")
    e(f"s_cbranch_execz {l_s}")
    e(f"buffer_store_dwordx4 v[{V_A0}:{V_A0 + 3}], v{V_T + 6}, s[{SRD_WS}:{SRD_WS + 3}], s{S_T1} offen sc1")
    e(f"{l_s}:")
    e("s_mov_b64 exec, -1")
    l_s = g.lab("ini")
    e(f"s_cmp_lg_u32 s{S_RW}, 3")
    e(f"s_cbranch_scc1 {l_s}")
    e(f"s_lshl_b32 s{S_T1}, s{S_BLK}, 5")
    e(f"v_lshlrev_b32 v{V_T + 6}, 4, v{V_LANE}")
    e("s_mov_b64 exec, 3")
    e(f"buffer_store_dwordx4 v[{V_A0}:{V_A0 + 3}], v{V_T + 6}, s[{SRD_WS}:{SRD_WS + 3}], s{S_T1} offen offset:{WS_STAT} sc1")
    e("s_mov_b64 exec, -1")
    e("s_cmp_ge_u32 s2, 160")
    e(f"s_cbranch_scc1 {l_s}")
    e(f"v_mul_u32_u24 v{V_T + 6}, 2560, v{V_LANE}")
    e(f"s_lshl_b32 s{S_T1}, s2, 4")
    e(f"s_add_u32 s{S_T1}, s{S_T1}, {WS_HV}")
    e(f"s_bfm_b64 exec, {R}, 0")
    e(f"buffer_store_dwordx4 v[{V_A0}:{V_A0 + 3}], v{V_T + 6}, s[{SRD_WS}:{SRD_WS + 3}], s{S_T1} offen sc1")
    e(f"{l_s}:")
    e("s_mov_b64 exec, -1")
    g.wait_tag("x")
    xf = V_T + 18
    for k in range(5):
        e(f"v_lshlrev_b32 v{xf + 2 * k}, 16, v{x0 + k}")
        e(f"v_and_b32 v{xf + 2 * k + 1}, 0xffff0000, v{x0 + k}")
    e(f"v_readfirstlane_b32 s{S_M}, v{xf}")
    e("s_nop 1")
    ln_stats(g, [xf + k for k in range(10)], S_M, V_T + 28, V_T + 29, V_T + 8, V_T + 30, V_T + 31)
    for r in range(3):
        e(f"v_sub_f32 v{V_XC + r}, v{V_XC + r}, v{V_T + 30}")
    for r in range(3):
        e(f"v_cvt_pk_bf16_f32 v{V_XC + r}, 0, v{V_XC + r}")
    for r in range(3):
        e(f"v_mul_f32 v{V_XC + r}, v{V_XC + r}, v{V_T + 31}")
    for r in range(3):
        e(f"v_cvt_pk_bf16_f32 v{V_XC + r}, v{V_XC + r}, v{V_XC + r}")
    g.stamp(2)
    e("s_nop 0")
    build_A(g, V_A0, V_XC, 0)
    nxt = nb
    pq = P["WQ_P"]
    for j in range(40):
        A = V_A0 if (j & 1) == 0 else V_A1
        An = V_A1 if (j & 1) == 0 else V_A0
        while nxt < 40 and nxt < j + pq:
            wq_issue(nxt); nxt += 1
        g.wait_tag(("wq", j))
        e("s_nop 0")
        r = V_W + 4 * j
        c = "0" if j == 0 else f"v[{V_G}:{V_G + 3}]"
        e(f"v_mfma_f32_16x16x32_bf16 v[{V_G}:{V_G + 3}], v[{A}:{A + 3}], v[{r}:{r + 3}], {c}")
        if j + 1 < 40:
            build_A(g, An, V_XC + ((j + 1) >> 4), (j + 1) & 15)
    e(f"v_and_b32 v{V_T}, 15, v{V_LANE}")
    e(f"v_lshrrev_b32 v{V_T + 1}, 4, v{V_LANE}")
    e(f"s_lshl_b32 s{S_T0}, s{S_RW}, 9")
    e(f"v_lshlrev_b32 v{V_T}, 5, v{V_T}")
    e(f"v_lshl_add_u32 v{V_T}, v{V_T + 1}, 4, v{V_T}")
    e(f"v_add_u32 v{V_T}, s{S_T0}, v{V_T}")
    e("s_mov_b32 exec_hi, 0")
    e("s_nop 1")
    e(f"ds_write_b128 v{V_T}, v[{V_G}:{V_G + 3}] offset:{L_QP}")
    e("s_mov_b32 exec_hi, -1")
    e("s_waitcnt vmcnt(0) lgkmcnt(0)")
    g.q = []
    e("s_barrier")
    g.stamp(3)
    g.srd(SRD_C, 38, 39, 256)
    l_s = g.lab("sig")
    e(f"s_cmp_lg_u32 s{S_RW}, 0")
    e(f"s_cbranch_scc1 {l_s}")
    e(f"v_mov_b32 v{V_T}, 1")
    e("s_mov_b64 exec, 1")
    e(f"buffer_atomic_add v{V_T}, off, s[{SRD_C}:{SRD_C + 3}], 0")
    e("s_mov_b64 exec, -1")
    e(f"{l_s}:")
    e(f"s_mov_b32 s{S_OFF}, 0")
    po = P["WO_P"]
    for rg in range(8):
        for cg in range(5):
            j = rg * 5 + cg
            r = V_W + 4 * j
            g.wait_n(po - 1)
            g.vm(f"buffer_load_dwordx4 v[{r}:{r + 3}], v{V_OFFB}, s[{SRD_B}:{SRD_B + 3}], s{S_OFF} offen offset:{cg * 256} {P['WPOL']}", ("wo", j))
        e(f"s_addk_i32 s{S_OFF}, 5120")
    g.stamp(4)
    top = g.lab("iw"); done = g.lab("iwd")
    e(f"s_mov_b32 s{S_SPIN}, {P['SPIN']}")
    e(f"{top}:")
    e(f"buffer_load_dword v{V_T}, off, s[{SRD_C}:{SRD_C + 3}], 0 sc1")
    e("s_waitcnt vmcnt(0)")
    e(f"v_cmp_gt_u32 vcc, 256, v{V_T}")
    e(f"s_sub_u32 s{S_SPIN}, s{S_SPIN}, 1")
    e(f"s_cbranch_scc1 {done}")
    e(f"s_cbranch_vccz {done}")
    e("s_sleep 16")
    e(f"s_branch {top}")
    e(f"{done}:")
    g.q = []
    mlp_loads(g)
    e(f"s_lshr_b32 s{S_T0}, s{S_BLK}, 2")
    e(f"s_lshl_b32 s{S_T0}, s{S_T0}, 7")
    e(f"v_and_b32 v{V_T}, 15, v{V_LANE}")
    e(f"v_lshlrev_b32 v{V_T}, 3, v{V_T}")
    poll_loop(g, [f"buffer_load_dwordx2 v[{V_T + 2}:{V_T + 3}], v{V_T}, s[{SRD_WS}:{SRD_WS + 3}], s{S_T0} offen offset:{WS_STAT} sc1"],
              [V_T + 3], sleep=32)
    g.stamp(5)
    e(f"v_mov_b32 v{V_T + 4}, v{V_T + 2}")
    for st in ["quad_perm:[1,0,3,2]", "quad_perm:[2,3,0,1]", "row_half_mirror", "row_mirror"]:
        e("s_nop 1")
        e(f"v_max_f32_dpp v{V_T + 4}, v{V_T + 4}, v{V_T + 4} {st} {DPPF}")
    e(f"v_sub_f32 v{V_T + 2}, v{V_T + 2}, v{V_T + 4}")
    e(f"v_mul_f32 v{V_T + 2}, {LOG2E:#x}, v{V_T + 2}")
    e(f"v_exp_f32 v{V_T + 2}, v{V_T + 2}")
    e("s_nop 0")
    e(f"v_mul_f32 v{V_T + 3}, v{V_T + 2}, v{V_T + 3}")
    for st in ["quad_perm:[1,0,3,2]", "quad_perm:[2,3,0,1]", "row_half_mirror", "row_mirror"]:
        e("s_nop 1")
        e(f"v_add_f32_dpp v{V_T + 3}, v{V_T + 3}, v{V_T + 3} {st} {DPPF}")
    e(f"v_rcp_f32 v{V_T + 3}, v{V_T + 3}")
    e("s_nop 0")
    e(f"v_mul_f32 v{V_T + 2}, v{V_T + 2}, v{V_T + 3}")
    e(f"s_lshl_b32 s{S_T0}, s{S_SPLIT}, 2")
    for w in range(4):
        e(f"v_readlane_b32 s{S_F + w}, v{V_T + 2}, s{S_T0}")
        e(f"s_add_u32 s{S_T0}, s{S_T0}, 1")
    if P["DRY"]:
        pass
    e("L_tail_H:")
    barrier(g)
    g.stamp(6)
    e(f"v_and_b32 v{V_T}, 15, v{V_LANE}")
    e(f"v_lshrrev_b32 v{V_T + 1}, 4, v{V_LANE}")
    e(f"s_lshl_b32 s{S_T0}, s{S_RW}, 7")
    e(f"v_lshl_add_u32 v{V_T + 2}, v{V_T}, 4, v{V_LDS}")
    e(f"v_lshl_add_u32 v{V_T + 2}, v{V_T + 1}, 2, v{V_T + 2}")
    e(f"v_add_u32 v{V_T + 2}, s{S_T0}, v{V_T + 2}")
    for w in range(4):
        e(f"ds_read_b32 v{V_T + 4 + w}, v{V_T + 2} offset:{L_OP + w * 512}")
    e(f"s_mul_i32 s{S_T0}, s{S_RW}, 2560")
    e(f"v_lshl_add_u32 v{V_T}, v{V_T}, 5, v{V_LDS}")
    e(f"v_lshl_add_u32 v{V_T}, v{V_T + 1}, 4, v{V_T}")
    e(f"v_add_u32 v{V_T}, s{S_T0}, v{V_T}")
    e("s_waitcnt lgkmcnt(0)")
    e(f"v_mul_f32 v{V_T + 4}, s{S_F}, v{V_T + 4}")
    for w in range(1, 4):
        e(f"v_fmac_f32 v{V_T + 4}, s{S_F + w}, v{V_T + 4 + w}")
    e(f"v_cvt_pk_bf16_f32 v{V_T + 4}, v{V_T + 4}, v{V_T + 4}")
    e("s_nop 1")
    build_A(g, V_A0, V_T + 4, 0)
    for rg in range(8):
        A = V_A0 if (rg & 1) == 0 else V_A1
        An = V_A1 if (rg & 1) == 0 else V_A0
        if rg == 0:
            e("s_nop 1")
        for cg in range(5):
            r = V_W + 4 * (rg * 5 + cg)
            acc = V_G + 4 * cg
            c = "0" if rg == 0 else f"v[{acc}:{acc + 3}]"
            e(f"v_mfma_f32_16x16x32_bf16 v[{acc}:{acc + 3}], v[{A}:{A + 3}], v[{r}:{r + 3}], {c}")
            if cg == 0 and rg + 1 < 8:
                build_A(g, An, V_T + 4, rg + 1)
    e("s_mov_b32 exec_hi, 0")
    e("s_nop 3")
    for cg in range(5):
        acc = V_G + 4 * cg
        e(f"ds_write_b128 v{V_T}, v[{acc}:{acc + 3}] offset:{L_GP + cg * 512}")
        if cg < 4:
            e("s_nop 0")
    e("s_mov_b32 exec_hi, -1")
    e("s_waitcnt lgkmcnt(0)")
    barrier(g)
    e(f"s_lshl_b32 s{S_T0}, s{S_RW}, 6")
    e(f"v_add_u32 v{V_T + 1}, s{S_T0}, v{V_LANE}")
    e(f"v_lshlrev_b32 v{V_T + 2}, 4, v{V_T + 1}")
    e(f"v_add_u32 v{V_T + 3}, v{V_T + 2}, v{V_LDS}")
    e(f"v_cmp_gt_u32 vcc, 160, v{V_T + 1}")
    e("s_and_saveexec_b64 s[42:43], vcc")
    e("s_cbranch_execz L_pub_done")
    for w in range(4):
        e(f"ds_read_b128 v[{V_T + 4 + 4 * w}:{V_T + 7 + 4 * w}], v{V_T + 3} offset:{L_GP + w * 2560}")
    e(f"s_mul_i32 s{S_T1}, s{S_BLK}, 2560")
    e(f"s_add_u32 s{S_T1}, s{S_T1}, {WS_PART}")
    e("s_waitcnt lgkmcnt(0)")
    for k in range(4):
        e(f"v_add_f32 v{V_T + 4 + k}, v{V_T + 4 + k}, v{V_T + 8 + k}")
        e(f"v_add_f32 v{V_T + 12 + k}, v{V_T + 12 + k}, v{V_T + 16 + k}")
    for k in range(4):
        e(f"v_add_f32 v{V_T + 4 + k}, v{V_T + 4 + k}, v{V_T + 12 + k}")
    for k in range(4):
        e(f"v_min_u32 v{V_T + 4 + k}, -2, v{V_T + 4 + k}")
    e(f"buffer_store_dwordx4 v[{V_T + 4}:{V_T + 7}], v{V_T + 2}, s[{SRD_WS}:{SRD_WS + 3}], s{S_T1} offen sc1")
    e("L_pub_done:")
    e("s_mov_b64 exec, -1")
    g.stamp(7)

    e("L_mlp:")
    e(f"s_and_b32 s{S_T0}, s2, 127")
    e(f"s_mul_i32 s{S_T0}, s{S_T0}, 20")
    e(f"v_add_u32 v{V_T}, s{S_T0}, v{V_LDS}")
    e(f"s_mov_b32 s{S_M}, 0xbdd2d3e8")
    e(f"s_mov_b32 s{S_M + 1}, 0xc0135761")
    e("s_waitcnt vmcnt(0)")
    barrier(g)
    tt = V_T + 2
    for k in range(5):
        e(f"ds_read_b32 v{tt + k}, v{V_T} offset:{L_T1 + 4 * k}")
    e(f"ds_read_b64 v[{V_T + 8}:{V_T + 9}], v{V_LDS} offset:{L_ST}")
    e("s_waitcnt lgkmcnt(0)")
    for k in range(5):
        e(f"v_sub_f32 v{tt + k}, v{tt + k}, v{V_T + 8}")
    for k in range(5):
        e(f"v_cvt_pk_bf16_f32 v{tt + k}, 0, v{tt + k}")
    for k in range(5):
        e(f"v_mul_f32 v{tt + k}, v{tt + k}, v{V_T + 9}")
    for k in range(5):
        e(f"v_cvt_pk_bf16_f32 v{tt + k}, 0, v{tt + k}")
    ac = V_T + 10
    u = V_T + 16
    z = V_T + 20
    for k in range(5):
        for i in range(4):
            e(f"v_mul_f32 v{u + i}, v{tt + k}, v{V_W1 + i}")
        for i in range(4):
            e(f"v_cvt_pk_bf16_f32 v{u + i}, 0, v{u + i}")
        for i in range(4):
            e(f"v_add_f32 v{u + i}, v{u + i}, v{V_B1 + i}")
        for i in range(4):
            e(f"v_cvt_pk_bf16_f32 v{u + i}, 0, v{u + i}")
        for i in range(4):
            e(f"v_mul_f32 v{z + i}, v{u + i}, v{u + i}")
        for i in range(4):
            e(f"v_mov_b32 v{z + 4}, s{S_M + 1}") if i == 0 and k == 0 else None
        for i in range(4):
            e(f"v_fma_f32 v{z + i}, v{z + i}, s{S_M}, v{z + 4}")
        for i in range(4):
            e(f"v_mul_f32 v{z + i}, v{z + i}, v{u + i}")
        for i in range(4):
            e(f"v_exp_f32 v{z + i}, v{z + i}")
        for i in range(4):
            e(f"v_add_f32 v{z + i}, 1.0, v{z + i}")
        for i in range(4):
            e(f"v_rcp_f32 v{z + i}, v{z + i}")
        for i in range(4):
            e(f"v_mul_f32 v{u + i}, v{u + i}, v{z + i}")
        for i in range(4):
            e(f"v_cvt_pk_bf16_f32 v{u + i}, 0, v{u + i}")
        for i in range(4):
            if i == 0:
                e(f"v_mul_f32 v{ac + k}, v{u}, v{V_W2}")
            else:
                e(f"v_fmac_f32 v{ac + k}, v{u + i}, v{V_W2 + i}")
    g.wave_reduce([(ac + k, "v_add_f32") for k in range(5)])
    e(f"s_lshl_b32 s{S_T1}, s{S_WAVE}, 5")
    e(f"v_add_u32 v{V_T + 1}, s{S_T1}, v{V_LDS}")
    e("s_lshl_b64 exec, 1, 63")
    e(f"ds_write_b128 v{V_T + 1}, v[{ac}:{ac + 3}] offset:{L_MP}")
    e(f"ds_write_b32 v{V_T + 1}, v{ac + 4} offset:{L_MP + 16}")
    e("s_mov_b64 exec, -1")
    e("s_waitcnt lgkmcnt(0)")
    barrier(g)
    if not P["DRY"]:
        e(f"s_cmp_lg_u32 s{S_WAVE}, 0")
        e("s_cbranch_scc1 L_fin")
    e(f"v_lshl_add_u32 v{V_T + 1}, v{V_LANE}, 2, v{V_LDS}")
    for w in range(8):
        e(f"ds_read_b32 v{V_T + 2 + w}, v{V_T + 1} offset:{L_MP + 32 * w}")
    e(f"s_lshr_b32 s{S_T0}, s{S_T0}, 1")
    e(f"v_lshl_add_u32 v{V_T + 10}, v{V_LANE}, 1, s{S_T0}")
    e(f"v_add_u32 v{V_T + 11}, v{V_T + 10}, v{V_LDS}")
    e(f"ds_read_u16 v{V_T + 11}, v{V_T + 11} offset:{L_HB}")
    g.srd(SRD_C, 36, 37, 2560)
    e(f"s_mul_i32 s{S_T1}, s{S_B}, 1280")
    e("s_waitcnt lgkmcnt(0)")
    for k in range(4):
        e(f"v_add_f32 v{V_T + 2 + k}, v{V_T + 2 + k}, v{V_T + 6 + k}")
    e(f"v_add_f32 v{V_T + 2}, v{V_T + 2}, v{V_T + 3}")
    e(f"v_add_f32 v{V_T + 4}, v{V_T + 4}, v{V_T + 5}")
    e("s_lshl_b32 s43, s26, 16")
    e(f"v_add_f32 v{V_T + 2}, v{V_T + 2}, v{V_T + 4}")
    e(f"v_lshlrev_b32 v{V_T + 11}, 16, v{V_T + 11}")
    e(f"v_cvt_pk_bf16_f32 v{V_T + 2}, 0, v{V_T + 2}")
    e(f"v_add_f32 v{V_T + 2}, s43, v{V_T + 2}")
    e(f"v_cvt_pk_bf16_f32 v{V_T + 2}, 0, v{V_T + 2}")
    e(f"v_add_f32 v{V_T + 2}, v{V_T + 11}, v{V_T + 2}")
    e(f"v_cvt_pk_bf16_f32 v{V_T + 2}, v{V_T + 2}, v{V_T + 2}")
    e("s_mov_b64 exec, 31")
    e(f"buffer_store_short v{V_T + 2}, v{V_T + 10}, s[{SRD_C}:{SRD_C + 3}], s{S_T1} offen")
    e("s_mov_b64 exec, -1")
    e("L_fin:")
    if P["STAMPS"]:
        g.stamp(15)
        e("s_waitcnt lgkmcnt(0)")
        e(f"s_add_u32 s{SRD_C}, s40, 0x10000000"); e(f"s_addc_u32 s{SRD_C + 1}, s41, 0")
        e(f"s_mov_b32 s{SRD_C + 2}, 0x100000"); e(f"s_mov_b32 s{SRD_C + 3}, 0x20000")
        e("s_lshl_b32 s10, s2, 7")
        e("s_mov_b64 exec, 1")
        hw0 = 0 if P["HFIRST"] else 4
        sw0 = 4 - hw0
        for wave, slots in [(hw0, [0, 1, 2, 3, 4, 5, 6, 7] + ([15] if hw0 == 0 else [])), (sw0, [8, 9, 10, 11, 12] + ([15] if sw0 == 0 else [])), (sw0 + 1, [13])]:
            l = g.lab("st")
            e(f"s_cmp_lg_u32 s{S_WAVE}, {wave}")
            e(f"s_cbranch_scc1 {l}")
            for k in slots:
                e(f"v_mov_b32 v{V_T}, s{64 + 2 * k}"); e(f"v_mov_b32 v{V_T + 1}, s{65 + 2 * k}")
                e(f"buffer_store_dwordx2 v[{V_T}:{V_T + 1}], off, s[{SRD_C}:{SRD_C + 3}], s10 offset:{8 * k}")
            e(f"{l}:")
    e("L_end:")
    e("s_endpgm")
    e('.section .rodata,"a"'); e(".p2align 6"); e(f".amdhsa_kernel {NAME}")
    e("  .amdhsa_next_free_vgpr 256"); e("  .amdhsa_next_free_sgpr 102"); e("  .amdhsa_accum_offset 256")
    e("  .amdhsa_group_segment_fixed_size 0"); e("  .amdhsa_kernarg_size 104"); e("  .amdhsa_user_sgpr_count 2")
    e("  .amdhsa_user_sgpr_kernarg_segment_ptr 1"); e("  .amdhsa_system_sgpr_workgroup_id_x 1")
    e("  .amdhsa_float_denorm_mode_32 3"); e("  .amdhsa_float_denorm_mode_16_64 3")
    e(".end_amdhsa_kernel")
    return "\n".join(x for x in g.o if x) + "\n"


def parse(a):
    kw = {}
    for x in a.split(","):
        if not x:
            continue
        k, v = x.split("=")
        kw[k] = v.replace("+", " ") if k in ("WPOL", "KPOL", "VPOL") else int(v)
    return kw


if __name__ == "__main__":
    out = sys.argv[1]
    kw = parse(sys.argv[2]) if len(sys.argv) > 2 else {}
    open(out, "w").write(gen(**kw))
```

```python
import sys
NAME = "sequential_preLN__mha_block_cached__mixer_token_mlp__decode_kernel"

DEF = dict(
    D=32,
    PS=6,
    HFIRST=1,
    WQ_BURST=12,
    WQ_P=12,
    WO_P=3,
    WPOL="nt",
    KPOL="nt",
    VPOL="nt",
    R=8,
    STAMPS=0,
    DRY=0,
    SPIN=200000,
)

WS_STAT = 0
WS_HV = 0x4000
WS_PART = 0x20000
WS_SIZE = WS_PART + 256 * 2560
L_QP = 0
L_OP = 2048
L_GP = 4096
L_T1 = L_GP + 10240
L_HB = L_T1 + 2560
L_ST = L_HB + 1280
L_MP = L_ST + 64
L_SZ = L_MP + 256
L_SZ = (L_SZ + 255) // 256 * 256

LOG2E = 0x3FB8AA3B
SCALE = 0x3DB504F3
INV640 = 0x3ACCCCCD
EPS = 0x3727C5AC
DPPF = "row_mask:0xf bank_mask:0xf"


class G:
    def __init__(self, P):
        self.P = P
        self.o = []
        self.q = []
        self.nlab = 0

    def e(self, s):
        self.o.append(s)

    def vm(self, s, tag=None):
        self.o.append(s)
        self.q.append(tag)

    def wait_tag(self, tag):
        idx = [k for k, t in enumerate(self.q) if t == tag]
        if not idx:
            return False
        i = max(idx)
        n = len(self.q) - 1 - i
        assert n <= 63
        self.e(f"s_waitcnt vmcnt({n})")
        self.q = self.q[i + 1:]
        return True

    def wait_n(self, n):
        if len(self.q) > n:
            self.e(f"s_waitcnt vmcnt({n})")
            self.q = self.q[len(self.q) - n:] if n else []

    def lab(self, base):
        self.nlab += 1
        return f"L_{base}_{self.nlab}"

    def stamp(self, k):
        if self.P["STAMPS"]:
            self.e(f"s_memrealtime s[{64 + 2 * k}:{65 + 2 * k}]")

    def srd(self, d, blo, bhi, size):
        self.e(f"s_mov_b32 s{d}, s{blo}")
        self.e(f"s_mov_b32 s{d + 1}, s{bhi}")
        self.e(f"s_mov_b32 s{d + 2}, {size}")
        self.e(f"s_mov_b32 s{d + 3}, 0x20000")

    def wave_reduce(self, regs_ops):
        steps = ["quad_perm:[1,0,3,2] " + DPPF, "quad_perm:[2,3,0,1] " + DPPF,
                 "row_half_mirror " + DPPF, "row_mirror " + DPPF,
                 "row_bcast:15 row_mask:0xa bank_mask:0xf", "row_bcast:31 row_mask:0xc bank_mask:0xf"]
        n = len(regs_ops)
        self.e("s_nop 1")
        for st in steps:
            for (r, op) in regs_ops:
                self.e(f"{op}_dpp v{r}, v{r}, v{r} {st}")
            if n < 3:
                self.e(f"s_nop {2 - n}" if n < 3 and 2 - n >= 0 else "")
        self.e("s_nop 0")


S_WAVE = 3
S_RW = 4
S_H = 5
S_B = 6
S_SPLIT = 7
S_BLK = 8
S_OFF = 9
S_T0, S_T1, S_T2, S_T3 = 10, 11, 12, 13
S_DRY = 14
S_SPIN = 15
SRD_A = 44
SRD_B = 48
SRD_X = 52
SRD_WS = 56
SRD_C = 60
S_F = 96
S_M = 42
V_LANE = 1
V_OFFA = 2
V_OFFB = 3
V_MASK = 4
V_W1 = 8
V_B1 = 12
V_W2 = 16
V_A0 = 20
V_A1 = 24
V_T = 28
V_LDS = 64
V_XR = 66
V_QB = 68
V_SC = 84
V_ACC = 92
V_MX = 108
V_RING = 128
V_XC = 68
V_G = 72
V_W = 96


def ln_stats(g, vals, sC, vS1, vS2, vtmp, out_m, out_r):
    e = g.e
    for i, v in enumerate(vals):
        t = vtmp + (i & 3)
        if sC is not None:
            e(f"v_subrev_f32 v{t}, s{sC}, v{v}")
        else:
            t = v
        if i == 0:
            e(f"v_mov_b32 v{vS1}, v{t}")
            e(f"v_mul_f32 v{vS2}, v{t}, v{t}")
        else:
            e(f"v_add_f32 v{vS1}, v{vS1}, v{t}")
            e(f"v_fmac_f32 v{vS2}, v{t}, v{t}")
    g.wave_reduce([(vS1, "v_add_f32"), (vS2, "v_add_f32")])
    e(f"v_readlane_b32 s{S_T0}, v{vS1}, 63")
    e(f"v_readlane_b32 s{S_T1}, v{vS2}, 63")
    e(f"s_mov_b32 s{S_T2}, {INV640:#x}")
    e("s_nop 0")
    e(f"v_mov_b32 v{vS1}, s{S_T0}")
    e(f"v_mov_b32 v{vS2}, s{S_T1}")
    e(f"v_mul_f32 v{vS1}, s{S_T2}, v{vS1}")
    e(f"v_mul_f32 v{vS2}, s{S_T2}, v{vS2}")
    e(f"v_fma_f32 v{vS2}, -v{vS1}, v{vS1}, v{vS2}")
    if sC is not None:
        e(f"v_add_f32 v{vS1}, s{sC}, v{vS1}")
    e(f"v_max_f32 v{vS2}, 0, v{vS2}")
    e(f"v_cvt_pk_bf16_f32 v{out_m}, 0, v{vS1}")
    e(f"v_cvt_pk_bf16_f32 v{vS2}, 0, v{vS2}")
    e(f"v_add_f32 v{vS2}, {EPS:#x}, v{vS2}")
    e(f"v_cvt_pk_bf16_f32 v{vS2}, 0, v{vS2}")
    e(f"v_sqrt_f32 v{vS2}, v{vS2}")
    e("s_nop 0")
    e(f"v_cvt_pk_bf16_f32 v{vS2}, 0, v{vS2}")
    e(f"v_rcp_f32 v{out_r}, v{vS2}")
    e("s_nop 0")


def build_A(g, dst, src, c):
    for j in range(4):
        g.e(f"v_and_b32_dpp v{dst + j}, v{src}, v{V_MASK + j} row_newbcast:{c} {DPPF}")


def mlp_loads(g):
    e = g.e
    e(f"v_lshlrev_b32 v{V_T}, 1, v0")
    for k, (lo, base) in enumerate([(28, V_W1), (30, V_B1), (32, V_W2)]):
        g.srd(SRD_C, lo, lo + 1, 3456)
        for i in range(4):
            e(f"v_mov_b32 v{base + i}, 0")
        for i in range(4):
            g.vm(f"buffer_load_short_d16_hi v{base + i}, v{V_T}, s[{SRD_C}:{SRD_C + 3}], 0 offen offset:{i * 1024}", "mlp")


def barrier(g):
    if g.P["DRY"]:
        l = g.lab("nb")
        g.e(f"s_cmp_lg_u32 s{S_DRY}, 0")
        g.e(f"s_cbranch_scc1 {l}")
        g.e("s_barrier")
        g.e(f"{l}:")
    else:
        g.e("s_barrier")


def poll_loop(g, loads, words, sleep=0):
    e = g.e
    top = g.lab("poll")
    done = g.lab("pdone")
    e(f"s_mov_b32 s{S_SPIN}, {g.P['SPIN']}")
    e(f"{top}:")
    for l in loads:
        e(l)
    e("s_waitcnt vmcnt(0)")
    t = V_T + 30
    w = list(words)
    if len(w) == 1:
        e(f"v_cmp_eq_u32 vcc, -1, v{w[0]}")
    else:
        first = True
        while w:
            if first:
                if len(w) >= 3:
                    e(f"v_max3_u32 v{t}, v{w[0]}, v{w[1]}, v{w[2]}"); w = w[3:]
                else:
                    e(f"v_max_u32 v{t}, v{w[0]}, v{w[1]}"); w = w[2:]
                first = False
            elif len(w) >= 2:
                e(f"v_max3_u32 v{t}, v{t}, v{w[0]}, v{w[1]}"); w = w[2:]
            else:
                e(f"v_max_u32 v{t}, v{t}, v{w[0]}"); w = w[1:]
        e(f"v_cmp_eq_u32 vcc, -1, v{t}")
    e(f"s_sub_u32 s{S_SPIN}, s{S_SPIN}, 1")
    e(f"s_cbranch_scc1 {done}")
    e(f"s_cbranch_vccz {done}")
    if sleep:
        e(f"s_sleep {sleep}")
    e(f"s_branch {top}")
    e(f"{done}:")
    g.q = []


def gen(**kw):
    P = dict(DEF); P.update(kw)
    g = G(P); e = g.e
    D = P["D"]; R = P["R"]
    lds_total = L_SZ * (2 if P["DRY"] else 1)
    e(f"; @launch grid=(256,1,1) block=(512,1,1) lds={lds_total}")
    e('.amdgcn_target "amdgcn-amd-amdhsa--gfx950"')
    e(".text"); e(f".globl {NAME}"); e(".p2align 8"); e(f".type {NAME},@function"); e(f"{NAME}:")
    e("s_cmp_ge_u32 s2, 256")
    e("s_cbranch_scc1 L_end")
    g.stamp(0)
    e("s_load_dwordx16 s[16:31], s[0:1], 0")
    e("s_load_dwordx8 s[32:39], s[0:1], 64")
    e("s_load_dwordx2 s[40:41], s[0:1], 96")
    e(f"v_lshrrev_b32 v{V_T}, 6, v0")
    e(f"v_and_b32 v{V_LANE}, 63, v0")
    e(f"v_readfirstlane_b32 s{S_WAVE}, v{V_T}")
    e(f"s_and_b32 s{S_H}, s2, 31")
    e(f"s_lshr_b32 s{S_B}, s2, 7")
    e(f"s_bfe_u32 s{S_SPLIT}, s2, 0x20005")
    e(f"s_lshl_b32 s{S_BLK}, s{S_H}, 2")
    e(f"s_add_u32 s{S_BLK}, s{S_BLK}, s{S_SPLIT}")
    e(f"s_lshl_b32 s{S_T0}, s{S_B}, 7")
    e(f"s_add_u32 s{S_BLK}, s{S_BLK}, s{S_T0}")
    e(f"s_and_b32 s{S_RW}, s{S_WAVE}, 3")
    e(f"s_mov_b32 s{S_DRY}, 0")
    e(f"v_mov_b32 v{V_LDS}, 0")
    e(f"v_lshrrev_b32 v{V_T + 1}, 4, v{V_LANE}")
    e(f"v_and_b32 v{V_T + 2}, 15, v{V_LANE}")
    e(f"s_cmp_lt_u32 s{S_WAVE}, 4")
    e(f"s_cbranch_scc{1 if P['HFIRST'] else 0} L_helper")

    e(f"v_bfe_u32 v{V_T + 3}, v{V_LANE}, 2, 2")
    e(f"v_and_b32 v{V_T + 4}, 3, v{V_LANE}")
    e(f"s_lshl_b32 s{S_T0}, s{S_RW}, 10")
    e(f"v_lshlrev_b32 v{V_OFFA}, 8, v{V_T + 3}")
    e(f"v_lshl_add_u32 v{V_OFFA}, v{V_T + 1}, 6, v{V_OFFA}")
    e(f"v_lshl_add_u32 v{V_OFFA}, v{V_T + 4}, 4, v{V_OFFA}")
    e(f"v_add_u32 v{V_OFFA}, s{S_T0}, v{V_OFFA}")
    e(f"v_lshl_add_u32 v{V_OFFB}, v{V_LANE}, 4, s{S_T0}")
    e(f"s_lshl_b32 s{S_T1}, s{S_BLK}, 19")
    e(f"s_mov_b32 s{S_OFF}, 0")
    e("s_waitcnt lgkmcnt(0)")
    e(f"s_add_u32 s{SRD_A}, s18, s{S_T1}"); e(f"s_addc_u32 s{SRD_A + 1}, s19, 0")
    e(f"s_mov_b32 s{SRD_A + 2}, 0x80000"); e(f"s_mov_b32 s{SRD_A + 3}, 0x20000")
    e(f"s_add_u32 s{SRD_B}, s20, s{S_T1}"); e(f"s_addc_u32 s{SRD_B + 1}, s21, 0")
    e(f"s_mov_b32 s{SRD_B + 2}, 0x80000"); e(f"s_mov_b32 s{SRD_B + 3}, 0x20000")
    NL = 128

    def issue(i):
        r = V_RING + (i % D) * 4
        g.wait_n(P["PS"] - 1)
        if i == NL:
            e(f"s_mov_b32 s{S_OFF}, 0")
        srd, off = (SRD_A, V_OFFA) if i < NL else (SRD_B, V_OFFB)
        g.vm(f"buffer_load_dwordx4 v[{r}:{r + 3}], v{off}, s[{srd}:{srd + 3}], s{S_OFF} offen {P['KPOL'] if i < NL else P['VPOL']}", ("kv", i))
        e(f"s_addk_i32 s{S_OFF}, 0x1000")

    for i in range(D):
        issue(i)
    g.stamp(8)
    def common_setup():
        e("s_load_dword s26, s[34:35], 0")
        g.srd(SRD_WS, 40, 41, WS_SIZE)
        g.srd(SRD_X, 16, 17, 2560)
        e(f"v_and_b32 v{V_T + 5}, 1, v{V_LANE}")
        e(f"v_mov_b32 v{V_T + 6}, 0xffff")
        e(f"v_cmp_eq_u32 vcc, 1, v{V_T + 5}")
        e(f"v_mov_b32 v{V_T + 7}, 0xffff0000")
        e(f"v_bfe_u32 v{V_T + 8}, v{V_LANE}, 1, 3")
        e(f"v_cndmask_b32 v{V_T + 6}, v{V_T + 6}, v{V_T + 7}, vcc")
        for j in range(4):
            e(f"v_cmp_eq_u32 vcc, {j}, v{V_T + 8}")
            e("s_nop 1")
            e(f"v_cndmask_b32 v{V_MASK + j}, 0, v{V_T + 6}, vcc")
    common_setup()
    mlp_loads(g)
    e(f"s_lshl_b32 s{S_T0}, s2, 4")
    e(f"v_and_b32 v{V_T + 5}, 1, v{V_LANE}")
    e(f"v_lshl_add_u32 v{V_T + 5}, v{V_T + 5}, 3, s{S_T0}")
    g.vm(f"buffer_load_dwordx2 v[{V_XR}:{V_XR + 1}], v{V_T + 5}, s[{SRD_X}:{SRD_X + 3}], 0 offen", "xr")
    e(f"s_mov_b32 s96, 0x22222222"); e(f"s_mov_b32 s97, 0x22222222")
    e(f"s_mov_b32 s98, 0x44444444"); e(f"s_mov_b32 s99, 0x44444444")
    e(f"s_mov_b32 s100, 0x88888888"); e(f"s_mov_b32 s101, 0x88888888")
    e(f"v_lshlrev_b32 v{V_T + 5}, 7, v{V_T + 1}")
    e(f"v_lshl_add_u32 v{V_T + 5}, v{V_T + 4}, 5, v{V_T + 5}")
    e("s_barrier")
    g.stamp(9)
    q0 = V_T + 4
    e(f"v_mov_b32 v{V_MX}, v{V_T + 5}")
    for w in range(4):
        e(f"ds_read_b128 v[{q0 + 8 * w}:{q0 + 8 * w + 3}], v{V_MX} offset:{L_QP + w * 512}")
        e(f"ds_read_b128 v[{q0 + 8 * w + 4}:{q0 + 8 * w + 7}], v{V_MX} offset:{L_QP + w * 512 + 16}")
    e("s_waitcnt lgkmcnt(0)")
    for i in range(8):
        e(f"v_add_f32 v{q0 + i}, v{q0 + i}, v{q0 + 8 + i}")
        e(f"v_add_f32 v{q0 + 16 + i}, v{q0 + 16 + i}, v{q0 + 24 + i}")
    for i in range(8):
        e(f"v_add_f32 v{q0 + i}, v{q0 + i}, v{q0 + 16 + i}")
    for j in range(4):
        e(f"v_cvt_pk_bf16_f32 v{q0 + 8 + j}, v{q0 + 2 * j}, v{q0 + 2 * j + 1}")
    for J in range(4):
        e(f"v_cmp_eq_u32 vcc, {J}, v{V_T + 3}")
        e("s_nop 1")
        for j in range(4):
            e(f"v_cndmask_b32 v{V_QB + 4 * J + j}, 0, v{q0 + 8 + j}, vcc")
    e(f"s_mov_b32 s{S_M}, {SCALE:#x}")
    e("s_nop 0")
    for gi in range(8):
        for L in range(16):
            i = gi * 16 + L
            a, J = L >> 2, L & 3
            r = V_RING + (i % D) * 4
            acc = V_ACC + 4 * a
            g.wait_tag(("kv", i))
            c = "0" if J == 0 else f"v[{acc}:{acc + 3}]"
            e(f"v_mfma_f32_16x16x32_bf16 v[{acc}:{acc + 3}], v[{r}:{r + 3}], v[{V_QB + 4 * J}:{V_QB + 4 * J + 3}], {c}")
            if i + D < 2 * NL:
                issue(i + D)
        e("s_nop 3")
        for a in range(4):
            acc = V_ACC + 4 * a
            t = V_T + a
            e(f"v_mov_b32_dpp v{t}, v{acc} quad_perm:[0,0,0,0] {DPPF}")
            for k in range(1, 4):
                e(f"v_add_f32_dpp v{t}, v{acc + k}, v{t} quad_perm:[{k},{k},{k},{k}] {DPPF}")
        e(f"v_cndmask_b32 v{V_T}, v{V_T}, v{V_T + 1}, s[96:97]")
        e(f"v_cndmask_b32 v{V_T}, v{V_T}, v{V_T + 2}, s[98:99]")
        e(f"v_cndmask_b32 v{V_T}, v{V_T}, v{V_T + 3}, s[100:101]")
        e(f"v_cvt_pk_bf16_f32 v{V_T}, 0, v{V_T}")
        e(f"v_mul_f32 v{V_T}, s{S_M}, v{V_T}")
        e(f"v_cvt_pk_bf16_f32 v{V_SC + gi}, 0, v{V_T}")
        if gi == 0:
            e(f"v_mov_b32 v{V_MX}, v{V_SC}")
        else:
            e(f"v_max_f32 v{V_MX}, v{V_MX}, v{V_SC + gi}")
    g.stamp(10)
    g.wave_reduce([(V_MX, "v_max_f32")])
    e(f"v_readlane_b32 s{S_M}, v{V_MX}, 63")
    e(f"s_mov_b32 s{S_M + 1}, {LOG2E:#x}")
    e("s_nop 0")
    for gi in range(8):
        e(f"v_subrev_f32 v{V_T + gi}, s{S_M}, v{V_SC + gi}")
    for gi in range(8):
        e(f"v_mul_f32 v{V_T + gi}, s{S_M + 1}, v{V_T + gi}")
    for gi in range(8):
        e(f"v_exp_f32 v{V_T + gi}, v{V_T + gi}")
    e("s_nop 0")
    for gi in range(8):
        e(f"v_cvt_pk_bf16_f32 v{V_SC + gi}, v{V_T + gi}, v{V_T + gi}")
    for gi in range(4):
        e(f"v_add_f32 v{V_T + gi}, v{V_T + gi}, v{V_T + 4 + gi}")
    e(f"v_add_f32 v{V_T}, v{V_T}, v{V_T + 1}")
    e(f"v_add_f32 v{V_T + 2}, v{V_T + 2}, v{V_T + 3}")
    e(f"v_add_f32 v{V_T + 9}, v{V_T}, v{V_T + 2}")
    build_A(g, V_A0, V_SC, 0)
    g.wave_reduce([(V_T + 9, "v_add_f32")])
    e(f"v_mov_b32 v{V_T + 8}, s{S_M}")
    e(f"v_min_u32 v{V_T + 9}, -2, v{V_T + 9}")
    e(f"s_lshl_b32 s{S_T0}, s{S_BLK}, 5")
    e(f"s_lshl_b32 s{S_T1}, s{S_RW}, 3")
    e(f"s_add_u32 s{S_T0}, s{S_T0}, s{S_T1}")
    e("s_lshl_b64 exec, 1, 63")
    g.vm(f"buffer_store_dwordx2 v[{V_T + 8}:{V_T + 9}], off, s[{SRD_WS}:{SRD_WS + 3}], s{S_T0} offset:{WS_STAT} sc1", "stat")
    e("s_mov_b64 exec, -1")
    for L in range(NL):
        i = NL + L
        r = V_RING + (i % D) * 4
        A = V_A0 if (L & 1) == 0 else V_A1
        An = V_A1 if (L & 1) == 0 else V_A0
        if not g.wait_tag(("kv", i)) and i + D - 1 >= 2 * NL:
            e("s_nop 0")
        c = "0" if L == 0 else f"v[{V_ACC}:{V_ACC + 3}]"
        e(f"v_mfma_f32_16x16x32_bf16 v[{V_ACC}:{V_ACC + 3}], v[{A}:{A + 3}], v[{r}:{r + 3}], {c}")
        if L + 1 < NL:
            n = (L + 1) & 15
            build_A(g, An, V_SC + ((L + 1) >> 4), 4 * (n & 3) + (n >> 2))
        if i + D < 2 * NL:
            issue(i + D)
        else:
            e("s_nop 0")
    g.stamp(11)
    g.q = []
    e("L_tail_S:")
    e(f"v_and_b32 v{V_T}, 15, v{V_LANE}")
    e(f"v_lshrrev_b32 v{V_T + 1}, 4, v{V_LANE}")
    e(f"s_lshl_b32 s{S_T0}, s{S_RW}, 9")
    e(f"v_lshl_add_u32 v{V_T}, v{V_T}, 5, v{V_LDS}")
    e(f"v_lshl_add_u32 v{V_T}, v{V_T + 1}, 4, v{V_T}")
    e(f"v_add_u32 v{V_T}, s{S_T0}, v{V_T}")
    e("s_mov_b32 exec_hi, 0")
    e("s_nop 1")
    e(f"ds_write_b128 v{V_T}, v[{V_ACC}:{V_ACC + 3}] offset:{L_OP}")
    e("s_mov_b32 exec_hi, -1")
    e("s_waitcnt lgkmcnt(0)")
    barrier(g)
    barrier(g)
    e(f"s_cmp_eq_u32 s{S_RW}, 0")
    e("s_cbranch_scc1 L_reducer")
    e(f"s_cmp_eq_u32 s{S_RW}, 1")
    e("s_cbranch_scc1 L_hop2")
    e("s_branch L_mlp")

    e("L_reducer:")
    e("s_cmp_ge_u32 s2, 160")
    e("s_cbranch_scc1 L_red_done")
    e("s_cmp_ge_u32 s2, 80")
    e(f"s_cselect_b32 s{S_T0}, {128 * 2560 - 80 * 32}, 0")
    e(f"s_lshl_b32 s{S_T1}, s2, 5")
    e(f"s_add_u32 s{S_T0}, s{S_T0}, s{S_T1}")
    e(f"s_add_u32 s{S_T0}, s{S_T0}, {WS_PART}")
    e(f"v_lshrrev_b32 v{V_T}, 1, v{V_LANE}")
    e(f"v_mul_u32_u24 v{V_T}, 2560, v{V_T}")
    e(f"v_and_b32 v{V_T + 1}, 1, v{V_LANE}")
    e(f"v_lshl_add_u32 v{V_T}, v{V_T + 1}, 4, v{V_T}")
    e(f"s_add_u32 s{S_T1}, s{S_T0}, {32 * 2560}")
    e(f"s_add_u32 s{S_T2}, s{S_T0}, {64 * 2560}")
    e(f"s_add_u32 s{S_T3}, s{S_T0}, {96 * 2560}")
    d0 = V_T + 4
    loads = [f"buffer_load_dwordx4 v[{d0 + 4 * k}:{d0 + 4 * k + 3}], v{V_T}, s[{SRD_WS}:{SRD_WS + 3}], s{S_T0 + k} offen sc1" for k in range(4)]
    poll_loop(g, loads, [d0 + k for k in range(16)])
    g.stamp(12)
    for k in range(4):
        e(f"v_add_f32 v{d0 + k}, v{d0 + k}, v{d0 + 4 + k}")
        e(f"v_add_f32 v{d0 + 8 + k}, v{d0 + 8 + k}, v{d0 + 12 + k}")
    for k in range(4):
        e(f"v_add_f32 v{d0 + k}, v{d0 + k}, v{d0 + 8 + k}")
    for st in ["quad_perm:[2,3,0,1]", "row_ror:4", "row_ror:8"]:
        for k in range(4):
            e(f"v_add_f32_dpp v{d0 + k}, v{d0 + k}, v{d0 + k} {st} {DPPF}")
    for sw in ["v_permlane16_swap_b32", "v_permlane32_swap_b32"]:
        for k in range(4):
            e(f"v_mov_b32 v{d0 + 4 + k}, v{d0 + k}")
        for k in range(4):
            e(f"{sw} v{d0 + k}, v{d0 + 4 + k}")
        e("s_nop 0")
        for k in range(4):
            e(f"v_add_f32 v{d0 + k}, v{d0 + k}, v{d0 + 4 + k}")
    e(f"v_lshlrev_b32 v{d0 + 4}, 16, v{V_XR}")
    e(f"v_and_b32 v{d0 + 5}, 0xffff0000, v{V_XR}")
    e(f"v_lshlrev_b32 v{d0 + 6}, 16, v{V_XR + 1}")
    e(f"v_and_b32 v{d0 + 7}, 0xffff0000, v{V_XR + 1}")
    for k in range(4):
        e(f"v_cvt_pk_bf16_f32 v{d0 + k}, 0, v{d0 + k}")
    for k in range(4):
        e(f"v_add_f32 v{d0 + k}, v{d0 + k}, v{d0 + 4 + k}")
    e(f"v_cvt_pk_bf16_f32 v{d0 + 8}, v{d0}, v{d0 + 1}")
    e(f"v_cvt_pk_bf16_f32 v{d0 + 9}, v{d0 + 2}, v{d0 + 3}")
    e(f"v_lshlrev_b32 v{V_T + 1}, 3, v{V_T + 1}")
    e(f"v_sub_u32 v{V_T}, v{V_T}, v{V_T + 1}")
    e(f"v_min_u32 v{d0 + 8}, -2, v{d0 + 8}")
    e(f"v_min_u32 v{d0 + 9}, -2, v{d0 + 9}")
    e(f"s_lshl_b32 s{S_T0}, s2, 4")
    e(f"s_add_u32 s{S_T0}, s{S_T0}, {WS_HV}")
    if 2 * R < 64:
        e(f"s_bfm_b64 exec, {2 * R}, 0")
    e(f"buffer_store_dwordx2 v[{d0 + 8}:{d0 + 9}], v{V_T}, s[{SRD_WS}:{SRD_WS + 3}], s{S_T0} offen sc1")
    e("s_mov_b64 exec, -1")
    e("L_red_done:")
    if P["DRY"]:
        e(f"s_cmp_lg_u32 s{S_DRY}, 0")
        e("s_cbranch_scc1 L_hop2")
    e("s_branch L_mlp")

    e("L_hop2:")
    e(f"s_and_b32 s{S_T0}, s2, {R - 1}")
    e(f"s_mul_i32 s{S_T0}, s{S_T0}, 2560")
    e(f"s_mul_i32 s{S_T1}, s{S_B}, 1280")
    e(f"s_add_u32 s{S_T0}, s{S_T0}, s{S_T1}")
    e(f"s_add_u32 s{S_T0}, s{S_T0}, {WS_HV}")
    e(f"v_lshlrev_b32 v{V_T}, 4, v{V_LANE}")
    e(f"v_lshlrev_b32 v{V_T + 1}, 2, v{V_LANE}")
    h0 = V_T + 4
    loads = [f"buffer_load_dwordx4 v[{h0}:{h0 + 3}], v{V_T}, s[{SRD_WS}:{SRD_WS + 3}], s{S_T0} offen sc1",
             f"buffer_load_dword v{h0 + 4}, v{V_T + 1}, s[{SRD_WS}:{SRD_WS + 3}], s{S_T0} offen offset:1024 sc1"]
    poll_loop(g, loads, [h0 + k for k in range(5)])
    g.stamp(13)
    f0 = V_T + 12
    for k in range(5):
        e(f"v_lshlrev_b32 v{f0 + 2 * k}, 16, v{h0 + k}")
        e(f"v_and_b32 v{f0 + 2 * k + 1}, 0xffff0000, v{h0 + k}")
    e(f"v_add_u32 v{V_T}, v{V_T}, v{V_LDS}")
    e(f"v_add_u32 v{V_T + 1}, v{V_T + 1}, v{V_LDS}")
    e(f"v_readfirstlane_b32 s{S_M}, v{f0}")
    e(f"ds_write_b128 v{V_T}, v[{h0}:{h0 + 3}] offset:{L_HB}")
    e(f"ds_write_b32 v{V_T + 1}, v{h0 + 4} offset:{L_HB + 1024}")
    vS1, vS2, vtm, vm_, vr_ = V_T + 22, V_T + 23, V_T + 24, V_T + 28, V_T + 29
    ln_stats(g, [f0 + k for k in range(10)], S_M, vS1, vS2, vtm, vm_, vr_)
    for k in range(10):
        e(f"v_sub_f32 v{f0 + k}, v{f0 + k}, v{vm_}")
    for k in range(10):
        e(f"v_cvt_pk_bf16_f32 v{f0 + k}, 0, v{f0 + k}")
    for k in range(10):
        e(f"v_mul_f32 v{f0 + k}, v{f0 + k}, v{vr_}")
    for k in range(10):
        e(f"v_cvt_pk_bf16_f32 v{f0 + k}, 0, v{f0 + k}")
    e(f"v_lshl_add_u32 v{V_T}, v{V_LANE}, 5, v{V_LDS}")
    e(f"v_lshl_add_u32 v{V_T + 1}, v{V_LANE}, 3, v{V_LDS}")
    e(f"ds_write_b128 v{V_T}, v[{f0}:{f0 + 3}] offset:{L_T1}")
    e(f"ds_write_b128 v{V_T}, v[{f0 + 4}:{f0 + 7}] offset:{L_T1 + 16}")
    e(f"ds_write_b64 v{V_T + 1}, v[{f0 + 8}:{f0 + 9}] offset:{L_T1 + 2048}")
    ln_stats(g, [f0 + k for k in range(10)], None, vS1, vS2, vtm, vm_, vr_)
    e(f"ds_write_b64 v{V_LDS}, v[{vm_}:{vr_}] offset:{L_ST}")
    e("s_waitcnt lgkmcnt(0)")
    e("s_branch L_mlp")

    e("L_helper:")
    g.q = []
    e(f"s_mul_i32 s{S_T0}, s{S_B}, 1280")
    e(f"v_lshl_add_u32 v{V_T + 3}, v{V_LANE}, 2, s{S_T0}")
    e(f"s_mul_i32 s{S_T1}, s{S_RW}, 320")
    e(f"s_add_u32 s{S_T1}, s{S_T1}, s{S_T0}")
    e(f"v_lshlrev_b32 v{V_T + 4}, 3, v{V_T + 2}")
    e(f"v_lshl_add_u32 v{V_T + 4}, v{V_T + 1}, 1, v{V_T + 4}")
    e(f"v_add_u32 v{V_T + 4}, s{S_T1}, v{V_T + 4}")
    e(f"s_mul_i32 s{S_T2}, s{S_RW}, {160 * 8192}")
    e(f"v_lshlrev_b32 v{V_OFFA}, 13, v{V_T + 1}")
    e(f"v_lshl_add_u32 v{V_OFFA}, v{V_T + 2}, 4, v{V_OFFA}")
    e(f"v_add_u32 v{V_OFFA}, s{S_T2}, v{V_OFFA}")
    e(f"s_mul_i32 s{S_T2}, s{S_RW}, {32 * 1280}")
    e(f"v_mul_u32_u24 v{V_OFFB}, 1280, v{V_T + 1}")
    e(f"v_lshl_add_u32 v{V_OFFB}, v{V_T + 2}, 4, v{V_OFFB}")
    e(f"v_add_u32 v{V_OFFB}, s{S_T2}, v{V_OFFB}")
    for r in range(3):
        e(f"v_mov_b32 v{V_XC + r}, 0")
    e(f"s_lshl_b32 s{S_T2}, s{S_H}, 8")
    e(f"s_mul_i32 s{S_T3}, s{S_H}, {128 * 1280}")
    e(f"s_mov_b32 s{S_OFF}, 0")
    e("s_waitcnt lgkmcnt(0)")
    g.srd(SRD_X, 16, 17, 2560)
    x0 = V_T + 12
    for k in range(5):
        g.vm(f"buffer_load_dword v{x0 + k}, v{V_T + 3}, s[{SRD_X}:{SRD_X + 3}], 0 offen offset:{k * 256}", "x")
    for r in range(3):
        g.vm(f"buffer_load_short_d16_hi v{V_XC + r}, v{V_T + 4}, s[{SRD_X}:{SRD_X + 3}], 0 offen offset:{r * 128}", "x")
    e(f"s_add_u32 s{SRD_A}, s22, s{S_T2}"); e(f"s_addc_u32 s{SRD_A + 1}, s23, 0")
    e(f"s_sub_u32 s{SRD_A + 2}, {640 * 8192}, s{S_T2}"); e(f"s_mov_b32 s{SRD_A + 3}, 0x20000")
    e(f"s_add_u32 s{SRD_B}, s24, s{S_T3}"); e(f"s_addc_u32 s{SRD_B + 1}, s25, 0")
    e(f"s_mov_b32 s{SRD_B + 2}, {128 * 1280}"); e(f"s_mov_b32 s{SRD_B + 3}, 0x20000")

    def wq_issue(j):
        r = V_W + 4 * j
        g.vm(f"buffer_load_dwordx4 v[{r}:{r + 3}], v{V_OFFA}, s[{SRD_A}:{SRD_A + 3}], s{S_OFF} offen {P['WPOL']}", ("wq", j))
        e(f"s_add_u32 s{S_OFF}, s{S_OFF}, 0x8000")

    nb = P["WQ_BURST"]
    for j in range(nb):
        wq_issue(j)
    g.stamp(1)
    common_setup()
    e(f"v_mov_b32 v{V_A0}, -1"); e(f"v_mov_b32 v{V_A0 + 1}, -1"); e(f"v_mov_b32 v{V_A0 + 2}, -1"); e(f"v_mov_b32 v{V_A0 + 3}, -1")
    e(f"s_lshl_b32 s{S_T0}, s{S_RW}, 6")
    e(f"v_add_u32 v{V_T + 5}, s{S_T0}, v{V_LANE}")
    e(f"v_lshlrev_b32 v{V_T + 6}, 4, v{V_T + 5}")
    e(f"s_mul_i32 s{S_T1}, s{S_BLK}, 2560")
    e(f"s_add_u32 s{S_T1}, s{S_T1}, {WS_PART}")
    e(f"v_cmp_gt_u32 vcc, 160, v{V_T + 5}")
    l_s = g.lab("ini")
    e("s_and_saveexec_b64 s[42:43], vcc")
    e(f"s_cbranch_execz {l_s}")
    e(f"buffer_store_dwordx4 v[{V_A0}:{V_A0 + 3}], v{V_T + 6}, s[{SRD_WS}:{SRD_WS + 3}], s{S_T1} offen sc1")
    e(f"{l_s}:")
    e("s_mov_b64 exec, -1")
    l_s = g.lab("ini")
    e(f"s_cmp_lg_u32 s{S_RW}, 3")
    e(f"s_cbranch_scc1 {l_s}")
    e(f"s_lshl_b32 s{S_T1}, s{S_BLK}, 5")
    e(f"v_lshlrev_b32 v{V_T + 6}, 4, v{V_LANE}")
    e("s_mov_b64 exec, 3")
    e(f"buffer_store_dwordx4 v[{V_A0}:{V_A0 + 3}], v{V_T + 6}, s[{SRD_WS}:{SRD_WS + 3}], s{S_T1} offen offset:{WS_STAT} sc1")
    e("s_mov_b64 exec, -1")
    e("s_cmp_ge_u32 s2, 160")
    e(f"s_cbranch_scc1 {l_s}")
    e(f"v_mul_u32_u24 v{V_T + 6}, 2560, v{V_LANE}")
    e(f"s_lshl_b32 s{S_T1}, s2, 4")
    e(f"s_add_u32 s{S_T1}, s{S_T1}, {WS_HV}")
    e(f"s_bfm_b64 exec, {R}, 0")
    e(f"buffer_store_dwordx4 v[{V_A0}:{V_A0 + 3}], v{V_T + 6}, s[{SRD_WS}:{SRD_WS + 3}], s{S_T1} offen sc1")
    e(f"{l_s}:")
    e("s_mov_b64 exec, -1")
    g.wait_tag("x")
    xf = V_T + 18
    for k in range(5):
        e(f"v_lshlrev_b32 v{xf + 2 * k}, 16, v{x0 + k}")
        e(f"v_and_b32 v{xf + 2 * k + 1}, 0xffff0000, v{x0 + k}")
    e(f"v_readfirstlane_b32 s{S_M}, v{xf}")
    e("s_nop 1")
    ln_stats(g, [xf + k for k in range(10)], S_M, V_T + 28, V_T + 29, V_T + 8, V_T + 30, V_T + 31)
    for r in range(3):
        e(f"v_sub_f32 v{V_XC + r}, v{V_XC + r}, v{V_T + 30}")
    for r in range(3):
        e(f"v_cvt_pk_bf16_f32 v{V_XC + r}, 0, v{V_XC + r}")
    for r in range(3):
        e(f"v_mul_f32 v{V_XC + r}, v{V_XC + r}, v{V_T + 31}")
    for r in range(3):
        e(f"v_cvt_pk_bf16_f32 v{V_XC + r}, v{V_XC + r}, v{V_XC + r}")
    g.stamp(2)
    e("s_nop 0")
    build_A(g, V_A0, V_XC, 0)
    nxt = nb
    pq = P["WQ_P"]
    for j in range(40):
        A = V_A0 if (j & 1) == 0 else V_A1
        An = V_A1 if (j & 1) == 0 else V_A0
        while nxt < 40 and nxt < j + pq:
            wq_issue(nxt); nxt += 1
        g.wait_tag(("wq", j))
        e("s_nop 0")
        r = V_W + 4 * j
        c = "0" if j == 0 else f"v[{V_G}:{V_G + 3}]"
        e(f"v_mfma_f32_16x16x32_bf16 v[{V_G}:{V_G + 3}], v[{A}:{A + 3}], v[{r}:{r + 3}], {c}")
        if j + 1 < 40:
            build_A(g, An, V_XC + ((j + 1) >> 4), (j + 1) & 15)
    e(f"v_and_b32 v{V_T}, 15, v{V_LANE}")
    e(f"v_lshrrev_b32 v{V_T + 1}, 4, v{V_LANE}")
    e(f"s_lshl_b32 s{S_T0}, s{S_RW}, 9")
    e(f"v_lshlrev_b32 v{V_T}, 5, v{V_T}")
    e(f"v_lshl_add_u32 v{V_T}, v{V_T + 1}, 4, v{V_T}")
    e(f"v_add_u32 v{V_T}, s{S_T0}, v{V_T}")
    e("s_mov_b32 exec_hi, 0")
    e("s_nop 1")
    e(f"ds_write_b128 v{V_T}, v[{V_G}:{V_G + 3}] offset:{L_QP}")
    e("s_mov_b32 exec_hi, -1")
    e("s_waitcnt vmcnt(0) lgkmcnt(0)")
    g.q = []
    e("s_barrier")
    g.stamp(3)
    g.srd(SRD_C, 38, 39, 256)
    l_s = g.lab("sig")
    e(f"s_cmp_lg_u32 s{S_RW}, 0")
    e(f"s_cbranch_scc1 {l_s}")
    e(f"v_mov_b32 v{V_T}, 1")
    e("s_mov_b64 exec, 1")
    e(f"buffer_atomic_add v{V_T}, off, s[{SRD_C}:{SRD_C + 3}], 0")
    e("s_mov_b64 exec, -1")
    e(f"{l_s}:")
    e(f"s_mov_b32 s{S_OFF}, 0")
    po = P["WO_P"]
    for rg in range(8):
        for cg in range(5):
            j = rg * 5 + cg
            r = V_W + 4 * j
            g.wait_n(po - 1)
            g.vm(f"buffer_load_dwordx4 v[{r}:{r + 3}], v{V_OFFB}, s[{SRD_B}:{SRD_B + 3}], s{S_OFF} offen offset:{cg * 256} {P['WPOL']}", ("wo", j))
        e(f"s_addk_i32 s{S_OFF}, 5120")
    g.stamp(4)
    top = g.lab("iw"); done = g.lab("iwd")
    e(f"s_mov_b32 s{S_SPIN}, {P['SPIN']}")
    e(f"{top}:")
    e(f"buffer_load_dword v{V_T}, off, s[{SRD_C}:{SRD_C + 3}], 0 sc1")
    e("s_waitcnt vmcnt(0)")
    e(f"v_cmp_gt_u32 vcc, 256, v{V_T}")
    e(f"s_sub_u32 s{S_SPIN}, s{S_SPIN}, 1")
    e(f"s_cbranch_scc1 {done}")
    e(f"s_cbranch_vccz {done}")
    e("s_sleep 16")
    e(f"s_branch {top}")
    e(f"{done}:")
    g.q = []
    mlp_loads(g)
    e(f"s_lshr_b32 s{S_T0}, s{S_BLK}, 2")
    e(f"s_lshl_b32 s{S_T0}, s{S_T0}, 7")
    e(f"v_and_b32 v{V_T}, 15, v{V_LANE}")
    e(f"v_lshlrev_b32 v{V_T}, 3, v{V_T}")
    poll_loop(g, [f"buffer_load_dwordx2 v[{V_T + 2}:{V_T + 3}], v{V_T}, s[{SRD_WS}:{SRD_WS + 3}], s{S_T0} offen offset:{WS_STAT} sc1"],
              [V_T + 3], sleep=32)
    g.stamp(5)
    e(f"v_mov_b32 v{V_T + 4}, v{V_T + 2}")
    for st in ["quad_perm:[1,0,3,2]", "quad_perm:[2,3,0,1]", "row_half_mirror", "row_mirror"]:
        e("s_nop 1")
        e(f"v_max_f32_dpp v{V_T + 4}, v{V_T + 4}, v{V_T + 4} {st} {DPPF}")
    e(f"v_sub_f32 v{V_T + 2}, v{V_T + 2}, v{V_T + 4}")
    e(f"v_mul_f32 v{V_T + 2}, {LOG2E:#x}, v{V_T + 2}")
    e(f"v_exp_f32 v{V_T + 2}, v{V_T + 2}")
    e("s_nop 0")
    e(f"v_mul_f32 v{V_T + 3}, v{V_T + 2}, v{V_T + 3}")
    for st in ["quad_perm:[1,0,3,2]", "quad_perm:[2,3,0,1]", "row_half_mirror", "row_mirror"]:
        e("s_nop 1")
        e(f"v_add_f32_dpp v{V_T + 3}, v{V_T + 3}, v{V_T + 3} {st} {DPPF}")
    e(f"v_rcp_f32 v{V_T + 3}, v{V_T + 3}")
    e("s_nop 0")
    e(f"v_mul_f32 v{V_T + 2}, v{V_T + 2}, v{V_T + 3}")
    e(f"s_lshl_b32 s{S_T0}, s{S_SPLIT}, 2")
    for w in range(4):
        e(f"v_readlane_b32 s{S_F + w}, v{V_T + 2}, s{S_T0}")
        e(f"s_add_u32 s{S_T0}, s{S_T0}, 1")
    if P["DRY"]:
        pass
    e("L_tail_H:")
    barrier(g)
    g.stamp(6)
    e(f"v_and_b32 v{V_T}, 15, v{V_LANE}")
    e(f"v_lshrrev_b32 v{V_T + 1}, 4, v{V_LANE}")
    e(f"s_lshl_b32 s{S_T0}, s{S_RW}, 7")
    e(f"v_lshl_add_u32 v{V_T + 2}, v{V_T}, 4, v{V_LDS}")
    e(f"v_lshl_add_u32 v{V_T + 2}, v{V_T + 1}, 2, v{V_T + 2}")
    e(f"v_add_u32 v{V_T + 2}, s{S_T0}, v{V_T + 2}")
    for w in range(4):
        e(f"ds_read_b32 v{V_T + 4 + w}, v{V_T + 2} offset:{L_OP + w * 512}")
    e(f"s_mul_i32 s{S_T0}, s{S_RW}, 2560")
    e(f"v_lshl_add_u32 v{V_T}, v{V_T}, 5, v{V_LDS}")
    e(f"v_lshl_add_u32 v{V_T}, v{V_T + 1}, 4, v{V_T}")
    e(f"v_add_u32 v{V_T}, s{S_T0}, v{V_T}")
    e("s_waitcnt lgkmcnt(0)")
    e(f"v_mul_f32 v{V_T + 4}, s{S_F}, v{V_T + 4}")
    for w in range(1, 4):
        e(f"v_fmac_f32 v{V_T + 4}, s{S_F + w}, v{V_T + 4 + w}")
    e(f"v_cvt_pk_bf16_f32 v{V_T + 4}, v{V_T + 4}, v{V_T + 4}")
    e("s_nop 1")
    build_A(g, V_A0, V_T + 4, 0)
    for rg in range(8):
        A = V_A0 if (rg & 1) == 0 else V_A1
        An = V_A1 if (rg & 1) == 0 else V_A0
        if rg == 0:
            e("s_nop 1")
        for cg in range(5):
            r = V_W + 4 * (rg * 5 + cg)
            acc = V_G + 4 * cg
            c = "0" if rg == 0 else f"v[{acc}:{acc + 3}]"
            e(f"v_mfma_f32_16x16x32_bf16 v[{acc}:{acc + 3}], v[{A}:{A + 3}], v[{r}:{r + 3}], {c}")
            if cg == 0 and rg + 1 < 8:
                build_A(g, An, V_T + 4, rg + 1)
    e("s_mov_b32 exec_hi, 0")
    e("s_nop 3")
    for cg in range(5):
        acc = V_G + 4 * cg
        e(f"ds_write_b128 v{V_T}, v[{acc}:{acc + 3}] offset:{L_GP + cg * 512}")
        if cg < 4:
            e("s_nop 0")
    e("s_mov_b32 exec_hi, -1")
    e("s_waitcnt lgkmcnt(0)")
    barrier(g)
    e(f"s_lshl_b32 s{S_T0}, s{S_RW}, 6")
    e(f"v_add_u32 v{V_T + 1}, s{S_T0}, v{V_LANE}")
    e(f"v_lshlrev_b32 v{V_T + 2}, 4, v{V_T + 1}")
    e(f"v_add_u32 v{V_T + 3}, v{V_T + 2}, v{V_LDS}")
    e(f"v_cmp_gt_u32 vcc, 160, v{V_T + 1}")
    e("s_and_saveexec_b64 s[42:43], vcc")
    e("s_cbranch_execz L_pub_done")
    for w in range(4):
        e(f"ds_read_b128 v[{V_T + 4 + 4 * w}:{V_T + 7 + 4 * w}], v{V_T + 3} offset:{L_GP + w * 2560}")
    e(f"s_mul_i32 s{S_T1}, s{S_BLK}, 2560")
    e(f"s_add_u32 s{S_T1}, s{S_T1}, {WS_PART}")
    e("s_waitcnt lgkmcnt(0)")
    for k in range(4):
        e(f"v_add_f32 v{V_T + 4 + k}, v{V_T + 4 + k}, v{V_T + 8 + k}")
        e(f"v_add_f32 v{V_T + 12 + k}, v{V_T + 12 + k}, v{V_T + 16 + k}")
    for k in range(4):
        e(f"v_add_f32 v{V_T + 4 + k}, v{V_T + 4 + k}, v{V_T + 12 + k}")
    for k in range(4):
        e(f"v_min_u32 v{V_T + 4 + k}, -2, v{V_T + 4 + k}")
    e(f"buffer_store_dwordx4 v[{V_T + 4}:{V_T + 7}], v{V_T + 2}, s[{SRD_WS}:{SRD_WS + 3}], s{S_T1} offen sc1")
    e("L_pub_done:")
    e("s_mov_b64 exec, -1")
    g.stamp(7)

    e("L_mlp:")
    e(f"s_and_b32 s{S_T0}, s2, 127")
    e(f"s_mul_i32 s{S_T0}, s{S_T0}, 20")
    e(f"v_add_u32 v{V_T}, s{S_T0}, v{V_LDS}")
    e(f"s_mov_b32 s{S_M}, 0xbdd2d3e8")
    e(f"s_mov_b32 s{S_M + 1}, 0xc0135761")
    e("s_waitcnt vmcnt(0)")
    barrier(g)
    tt = V_T + 2
    for k in range(5):
        e(f"ds_read_b32 v{tt + k}, v{V_T} offset:{L_T1 + 4 * k}")
    e(f"ds_read_b64 v[{V_T + 8}:{V_T + 9}], v{V_LDS} offset:{L_ST}")
    e("s_waitcnt lgkmcnt(0)")
    for k in range(5):
        e(f"v_sub_f32 v{tt + k}, v{tt + k}, v{V_T + 8}")
    for k in range(5):
        e(f"v_cvt_pk_bf16_f32 v{tt + k}, 0, v{tt + k}")
    for k in range(5):
        e(f"v_mul_f32 v{tt + k}, v{tt + k}, v{V_T + 9}")
    for k in range(5):
        e(f"v_cvt_pk_bf16_f32 v{tt + k}, 0, v{tt + k}")
    ac = V_T + 10
    u = V_T + 16
    z = V_T + 20
    for k in range(5):
        for i in range(4):
            e(f"v_mul_f32 v{u + i}, v{tt + k}, v{V_W1 + i}")
        for i in range(4):
            e(f"v_cvt_pk_bf16_f32 v{u + i}, 0, v{u + i}")
        for i in range(4):
            e(f"v_add_f32 v{u + i}, v{u + i}, v{V_B1 + i}")
        for i in range(4):
            e(f"v_cvt_pk_bf16_f32 v{u + i}, 0, v{u + i}")
        for i in range(4):
            e(f"v_mul_f32 v{z + i}, v{u + i}, v{u + i}")
        for i in range(4):
            e(f"v_mov_b32 v{z + 4}, s{S_M + 1}") if i == 0 and k == 0 else None
        for i in range(4):
            e(f"v_fma_f32 v{z + i}, v{z + i}, s{S_M}, v{z + 4}")
        for i in range(4):
            e(f"v_mul_f32 v{z + i}, v{z + i}, v{u + i}")
        for i in range(4):
            e(f"v_exp_f32 v{z + i}, v{z + i}")
        for i in range(4):
            e(f"v_add_f32 v{z + i}, 1.0, v{z + i}")
        for i in range(4):
            e(f"v_rcp_f32 v{z + i}, v{z + i}")
        for i in range(4):
            e(f"v_mul_f32 v{u + i}, v{u + i}, v{z + i}")
        for i in range(4):
            e(f"v_cvt_pk_bf16_f32 v{u + i}, 0, v{u + i}")
        for i in range(4):
            if i == 0:
                e(f"v_mul_f32 v{ac + k}, v{u}, v{V_W2}")
            else:
                e(f"v_fmac_f32 v{ac + k}, v{u + i}, v{V_W2 + i}")
    g.wave_reduce([(ac + k, "v_add_f32") for k in range(5)])
    e(f"s_lshl_b32 s{S_T1}, s{S_WAVE}, 5")
    e(f"v_add_u32 v{V_T + 1}, s{S_T1}, v{V_LDS}")
    e("s_lshl_b64 exec, 1, 63")
    e(f"ds_write_b128 v{V_T + 1}, v[{ac}:{ac + 3}] offset:{L_MP}")
    e(f"ds_write_b32 v{V_T + 1}, v{ac + 4} offset:{L_MP + 16}")
    e("s_mov_b64 exec, -1")
    e("s_waitcnt lgkmcnt(0)")
    barrier(g)
    if not P["DRY"]:
        e(f"s_cmp_lg_u32 s{S_WAVE}, 0")
        e("s_cbranch_scc1 L_fin")
    e(f"v_lshl_add_u32 v{V_T + 1}, v{V_LANE}, 2, v{V_LDS}")
    for w in range(8):
        e(f"ds_read_b32 v{V_T + 2 + w}, v{V_T + 1} offset:{L_MP + 32 * w}")
    e(f"s_lshr_b32 s{S_T0}, s{S_T0}, 1")
    e(f"v_lshl_add_u32 v{V_T + 10}, v{V_LANE}, 1, s{S_T0}")
    e(f"v_add_u32 v{V_T + 11}, v{V_T + 10}, v{V_LDS}")
    e(f"ds_read_u16 v{V_T + 11}, v{V_T + 11} offset:{L_HB}")
    g.srd(SRD_C, 36, 37, 2560)
    e(f"s_mul_i32 s{S_T1}, s{S_B}, 1280")
    e("s_waitcnt lgkmcnt(0)")
    for k in range(4):
        e(f"v_add_f32 v{V_T + 2 + k}, v{V_T + 2 + k}, v{V_T + 6 + k}")
    e(f"v_add_f32 v{V_T + 2}, v{V_T + 2}, v{V_T + 3}")
    e(f"v_add_f32 v{V_T + 4}, v{V_T + 4}, v{V_T + 5}")
    e("s_lshl_b32 s43, s26, 16")
    e(f"v_add_f32 v{V_T + 2}, v{V_T + 2}, v{V_T + 4}")
    e(f"v_lshlrev_b32 v{V_T + 11}, 16, v{V_T + 11}")
    e(f"v_cvt_pk_bf16_f32 v{V_T + 2}, 0, v{V_T + 2}")
    e(f"v_add_f32 v{V_T + 2}, s43, v{V_T + 2}")
    e(f"v_cvt_pk_bf16_f32 v{V_T + 2}, 0, v{V_T + 2}")
    e(f"v_add_f32 v{V_T + 2}, v{V_T + 11}, v{V_T + 2}")
    e(f"v_cvt_pk_bf16_f32 v{V_T + 2}, v{V_T + 2}, v{V_T + 2}")
    e("s_mov_b64 exec, 31")
    e(f"buffer_store_short v{V_T + 2}, v{V_T + 10}, s[{SRD_C}:{SRD_C + 3}], s{S_T1} offen")
    e("s_mov_b64 exec, -1")
    e("L_fin:")
    if P["STAMPS"]:
        g.stamp(15)
        e("s_waitcnt lgkmcnt(0)")
        if P["STAMPS"] == 1:
            e(f"s_add_u32 s{SRD_C}, s40, 0x10000000"); e(f"s_addc_u32 s{SRD_C + 1}, s41, 0")
            e(f"s_mov_b32 s{SRD_C + 2}, 0x100000"); e(f"s_mov_b32 s{SRD_C + 3}, 0x20000")
        else:
            g.srd(SRD_C, 38, 39, 256)
        e("s_lshl_b32 s10, s2, 7")
        e("s_mov_b64 exec, 1")
        hw0 = 0 if P["HFIRST"] else 4
        sw0 = 4 - hw0
        for wave, slots in [(hw0, [0, 1, 2, 3, 4, 5, 6, 7] + ([15] if hw0 == 0 else [])), (sw0, [8, 9, 10, 11, 12] + ([15] if sw0 == 0 else [])), (sw0 + 1, [13])]:
            l = g.lab("st")
            e(f"s_cmp_lg_u32 s{S_WAVE}, {wave}")
            e(f"s_cbranch_scc1 {l}")
            for k in slots:
                if P["STAMPS"] == 1:
                    e(f"v_mov_b32 v{V_T}, s{64 + 2 * k}"); e(f"v_mov_b32 v{V_T + 1}, s{65 + 2 * k}")
                    e(f"buffer_store_dwordx2 v[{V_T}:{V_T + 1}], off, s[{SRD_C}:{SRD_C + 3}], s10 offset:{8 * k}")
                elif k != 12:
                    if k == 0:
                        e(f"v_not_b32 v{V_T}, s64")
                        e(f"buffer_atomic_umax v{V_T}, off, s[{SRD_C}:{SRD_C + 3}], 0 offset:56")
                        e(f"v_mov_b32 v{V_T + 1}, s64")
                        e(f"buffer_atomic_umax v{V_T + 1}, off, s[{SRD_C}:{SRD_C + 3}], 0 offset:48")
                    else:
                        e(f"v_mov_b32 v{V_T + 2 + k}, s{64 + 2 * k}")
                        e(f"buffer_atomic_umax v{V_T + 2 + k}, off, s[{SRD_C}:{SRD_C + 3}], 0 offset:{4 * k}")
            e(f"{l}:")
    e("L_end:")
    e("s_endpgm")
    e('.section .rodata,"a"'); e(".p2align 6"); e(f".amdhsa_kernel {NAME}")
    e("  .amdhsa_next_free_vgpr 256"); e("  .amdhsa_next_free_sgpr 102"); e("  .amdhsa_accum_offset 256")
    e("  .amdhsa_group_segment_fixed_size 0"); e("  .amdhsa_kernarg_size 104"); e("  .amdhsa_user_sgpr_count 2")
    e("  .amdhsa_user_sgpr_kernarg_segment_ptr 1"); e("  .amdhsa_system_sgpr_workgroup_id_x 1")
    e("  .amdhsa_float_denorm_mode_32 3"); e("  .amdhsa_float_denorm_mode_16_64 3")
    e(".end_amdhsa_kernel")
    return "\n".join(x for x in g.o if x) + "\n"


def parse(a):
    kw = {}
    for x in a.split(","):
        if not x:
            continue
        k, v = x.split("=")
        kw[k] = v.replace("+", " ") if k in ("WPOL", "KPOL", "VPOL") else int(v)
    return kw


if __name__ == "__main__":
    out = sys.argv[1]
    kw = parse(sys.argv[2]) if len(sys.argv) > 2 else {}
    open(out, "w").write(gen(**kw))
```
